```python
import torch

def _softmax(x, axis=-1):
    return torch.softmax(x, dim=axis)

def _gelu(x):
    return torch.nn.functional.gelu(x, approximate='tanh')

def _silu(x):
    return torch.nn.functional.silu(x)

def _sigmoid(x):
    return torch.sigmoid(x)

def _layernorm(x, axis=-1, eps=1e-05):
    m = x.mean(dim=axis, keepdim=True)
    v = x.var(dim=axis, keepdim=True, unbiased=False)
    return (x - m) / torch.sqrt(v + eps)

def _scatter_add(tgt, idx, src, axis=0):
    return tgt.clone().index_add_(axis, idx, src)

def _segment_sum(src, seg, n):
    out = torch.zeros((n,) + src.shape[1:], dtype=src.dtype)
    return out.index_add_(0, seg, src)

def _pad(x, pw):
    flat = tuple((v for pair in reversed(pw) for v in pair))
    return torch.nn.functional.pad(x, flat)
kernel_name = 'adaLN_cond__sliding_local_dilated__glu_gated_geglu__prompt'

def setup_inputs():

    _w = lambda a: (lambda t: t.to(torch.bfloat16) if t.is_floating_point() else t)(torch.as_tensor(a))

    def _A_setup():
        B, S, D = (1, 2048, 448)
        return {'x': _w((lambda *s: torch.randn(*s, dtype=torch.bfloat16) * 0.05)(B, S, D)), 'wqkv': _w((lambda *s: torch.randn(*s, dtype=torch.bfloat16) * 0.05)(D, 3 * D)), 'wo': _w((lambda *s: torch.randn(*s, dtype=torch.bfloat16) * 0.05)(D, D))}
    _A_in = _A_setup()

    def _B_setup():
        B, S, Dm, Df = (1, 2048, 448, 1792)
        return {'x': _w((lambda *s: torch.randn(*s, dtype=torch.bfloat16) * 0.05)(B, S, Dm)), 'w_gate': _w((lambda *s: torch.randn(*s, dtype=torch.bfloat16) * 0.8)(Dm, Df) * Dm ** (-0.5)), 'w_up': _w((lambda *s: torch.randn(*s, dtype=torch.bfloat16) * 0.8)(Dm, Df) * Dm ** (-0.5)), 'w_down': _w((lambda *s: torch.randn(*s, dtype=torch.bfloat16) * 0.8)(Df, Dm) * Df ** (-0.5))}
    _B_in = _B_setup()
    return {'A_x': _A_in['x'], 'A_wqkv': _A_in['wqkv'], 'A_wo': _A_in['wo'], 'B_x': _B_in['x'], 'B_w_gate': _B_in['w_gate'], 'B_w_up': _B_in['w_up'], 'B_w_down': _B_in['w_down'], 'c': _w((lambda *s: torch.randn(*s, dtype=torch.bfloat16) * 0.1)(1, 448) * 8.0), 'w_mod': _w((lambda *s: torch.randn(*s, dtype=torch.bfloat16) * 0.1)(448, 6 * 448) * 448 ** (-0.5) * 8.0)}

def reference(A_x, A_wqkv, A_wo, B_x, B_w_gate, B_w_up, B_w_down, c, w_mod):

    def _A_ref(x, wqkv, wo):
        B, S, D = x.shape
        H = 16
        Dh = D // H
        W, dil = (8, 2)
        qkv = (lambda x, *d: x.permute(*d))((x @ wqkv).reshape(B, S, 3, H, Dh), 2, 0, 3, 1, 4)
        q, k, v = (qkv[0], qkv[1], qkv[2])
        scale = Dh ** (-0.5)
        pos = torch.arange(S)
        off = torch.arange(W) * dil
        idx = pos[:, None] - off[None, :]
        mask = idx >= 0
        idx_c = torch.where(mask, idx, 0).reshape(-1)
        kg = k[:, :, idx_c, :].reshape(B, H, S, W, Dh)
        vg = v[:, :, idx_c, :].reshape(B, H, S, W, Dh)
        logits = torch.einsum('bhsd,bhswd->bhsw', q, kg) * scale
        logits = torch.where(mask[None, None, :, :], logits, -1000000000.0)
        attn = _softmax(logits, axis=-1)
        o = torch.einsum('bhsw,bhswd->bhsd', attn, vg)
        return (lambda x, *d: x.permute(*d))(o, 0, 2, 1, 3).reshape(B, S, D) @ wo

    def _B_ref(x, w_gate, w_up, w_down):
        g = torch.einsum('bsd,df->bsf', x, w_gate)
        u = torch.einsum('bsd,df->bsf', x, w_up)
        h = _gelu(g) * u
        return torch.einsum('bsf,fd->bsd', h, w_down)
    x = A_x
    mod = (_silu(c) @ w_mod).reshape(c.shape[0], 6, 1, -1)
    sa, ca, ga, sb, cb, gb = (mod[:, 0].clone(), mod[:, 1].clone(), mod[:, 2].clone(), mod[:, 3].clone(), mod[:, 4].clone(), mod[:, 5].clone())
    h = _layernorm(x, axis=-1) * (1 + ca) + sa
    x = x + ga * _A_ref(h, A_wqkv, A_wo)
    h = _layernorm(x, axis=-1) * (1 + cb) + sb
    x = x + gb * _B_ref(h, B_w_gate, B_w_up, B_w_down)
    return x
```

```python
import re

TRANS = ("v_exp_", "v_log_", "v_rcp_", "v_rsq_", "v_sqrt_", "v_sin_", "v_cos_")

def split_ops(s):
    out, depth, cur = [], 0, ""
    for ch in s:
        if ch in "[(": depth += 1
        if ch in "])": depth -= 1
        if ch == "," and depth == 0:
            out.append(cur.strip()); cur = ""
        else:
            cur += ch
    if cur.strip(): out.append(cur.strip())
    return out

_reg_re = re.compile(r"^(-|\|)?(?:abs\()?([vas])(?:(\d+)|\[(\d+):(\d+)\])")
def regs_of(op):
    op = op.strip()
    tok = op.split()[0] if op else op
    if tok in ("vcc",): return [("s", 106), ("s", 107)]
    if tok == "vcc_lo": return [("s", 106)]
    if tok == "vcc_hi": return [("s", 107)]
    if tok == "exec": return [("s", 126), ("s", 127)]
    if tok == "exec_lo": return [("s", 126)]
    if tok == "exec_hi": return [("s", 127)]
    if tok == "m0": return [("s", 124)]
    m = _reg_re.match(tok)
    if not m: return []
    k = m.group(2)
    if m.group(3) is not None: return [(k, int(m.group(3)))]
    return [(k, i) for i in range(int(m.group(4)), int(m.group(5)) + 1)]

class Ins:
    __slots__ = ("text", "op", "cls", "rd", "wr", "srcC", "srcAB", "passes", "trans", "dpp", "perm",
                 "rdlane", "vm", "lgkm", "wide_store", "dma", "smem", "tok", "label", "branch", "nops", "storedata")
    def __init__(self, text):
        self.text = text
        self.rd, self.wr, self.srcC, self.srcAB, self.storedata = [], [], [], [], []
        self.passes = 0; self.trans = False; self.dpp = False; self.perm = False; self.rdlane = False
        self.vm = False; self.lgkm = False; self.wide_store = False; self.dma = False; self.smem = False
        self.tok = None; self.label = None; self.branch = None; self.nops = 0
        t = text.split(";")[0].strip()
        if t.endswith(":"):
            self.op = "label"; self.cls = "label"; self.label = t[:-1]; return
        sp = t.split(None, 1)
        op = sp[0]; self.op = op
        ops = split_ops(sp[1]) if len(sp) > 1 else []
        R = lambda i: regs_of(ops[i]) if i < len(ops) else []
        allfrom = lambda i: [r for o in ops[i:] for r in regs_of(o)]
        if op.startswith("v_mfma"):
            self.cls = "mfma"; self.wr = R(0); self.srcAB = R(1) + R(2); self.srcC = R(3)
            self.rd = self.srcAB + self.srcC
            self.passes = 8 if "32x32" in op else 4
        elif op.startswith("v_"):
            self.cls = "valu"
            self.trans = op.startswith(TRANS)
            self.dpp = op.endswith("_dpp") or "row_" in t or "quad_perm" in t
            if op.startswith("v_cmp"):
                self.wr = R(0); self.rd = allfrom(1)
            elif op.startswith("v_permlane") and "swap" in op:
                self.perm = True; self.wr = R(0) + R(1); self.rd = R(0) + R(1)
            elif op.startswith(("v_readfirstlane", "v_readlane")):
                self.rdlane = True; self.wr = R(0); self.rd = allfrom(1)
            elif op.startswith(("v_add_co", "v_sub_co", "v_addc_co", "v_subb_co")):
                self.wr = R(0) + R(1); self.rd = allfrom(2)
            elif op.startswith(("v_fmac", "v_dot2c", "v_pk_fmac")) or self.dpp:
                self.wr = R(0); self.rd = allfrom(0)
            elif op == "v_nop":
                pass
            else:
                self.wr = R(0); self.rd = allfrom(1)
                if op.startswith("v_cndmask") and len(ops) == 3: self.rd += regs_of("vcc")
        elif op.startswith("ds_"):
            self.cls = "ds"; self.lgkm = True
            if op.startswith(("ds_read", "ds_bpermute", "ds_permute", "ds_swizzle")):
                self.wr = R(0); self.rd = allfrom(1)
            else:
                self.rd = allfrom(0)
        elif op.startswith(("buffer_load", "global_load")):
            self.cls = "vmem"; self.vm = True
            if t.endswith(" lds") or " lds " in t or "load_lds" in op:
                self.dma = True; self.rd = allfrom(0) + regs_of("m0")
            else:
                self.wr = R(0); self.rd = allfrom(1)
        elif op.startswith(("buffer_store", "global_store")):
            self.cls = "vmem"; self.vm = True; self.rd = allfrom(0)
            self.storedata = R(0) if op.startswith("buffer") else R(1)
            self.wide_store = op.endswith(("x3", "x4"))
        elif op.startswith(("buffer_atomic", "global_atomic")):
            self.cls = "vmem"; self.vm = True
            if " sc0" in t:
                self.wr = R(0); self.rd = allfrom(0 if op.startswith("buffer") else 1)
            else:
                self.rd = allfrom(0)
        elif op.startswith(("buffer_wbl2", "buffer_inv")):
            self.cls = "vmem"; self.vm = True
        elif op.startswith(("s_load", "s_buffer_load", "s_memtime", "s_memrealtime")):
            self.cls = "smem"; self.smem = True; self.lgkm = True; self.wr = R(0); self.rd = allfrom(1)
        elif op.startswith("s_"):
            self.cls = "salu"
            if op == "s_nop":
                self.nops = int(ops[0], 0) + 1
            elif op.startswith(("s_cbranch", "s_branch")):
                self.branch = ops[0]
                if "vcc" in op: self.rd = regs_of("vcc")
                if "exec" in op: self.rd = regs_of("exec")
            elif op.startswith(("s_cmp", "s_bitcmp", "s_waitcnt", "s_barrier", "s_endpgm", "s_setprio", "s_sleep", "s_setpc")):
                self.rd = allfrom(0)
            elif "saveexec" in op:
                self.wr = R(0) + regs_of("exec"); self.rd = allfrom(1) + regs_of("exec")
            else:
                self.wr = R(0); self.rd = allfrom(1)
                if op.startswith(("s_addk", "s_mulk")): self.rd += R(0)
        else:
            raise ValueError("unknown op " + text)

class Kernel:
    def __init__(self, name):
        self.name = name
        self.ins = []
        self.vmq = []
        self.lgq = []
        self.nid = 0
        self.auto = True
        self.snap = {}
    def _wait_vm_idx(self, idx):
        n = len(self.vmq) - 1 - idx
        self._raw(f"s_waitcnt vmcnt({min(n,63)})")
        if n > 63: n = 63
        self.vmq = self.vmq[len(self.vmq) - n:] if n else []
    def _wait_lg_idx(self, idx):
        if any(e[2] for e in self.lgq):
            n = 0
        else:
            n = min(len(self.lgq) - 1 - idx, 15)
        self._raw(f"s_waitcnt lgkmcnt({n})")
        self.lgq = self.lgq[len(self.lgq) - n:] if n else []
    def _raw(self, text):
        i = Ins(text); self.ins.append(i); return i
    def wait_vm(self, tok):
        for k in range(len(self.vmq) - 1, -1, -1):
            if self.vmq[k][0] <= tok:
                self._wait_vm_idx(k); return
    def wait_lg(self, tok):
        for k in range(len(self.lgq) - 1, -1, -1):
            if self.lgq[k][0] <= tok:
                self._wait_lg_idx(k); return
    def wait_all_vm(self):
        if self.vmq: self._wait_vm_idx(len(self.vmq) - 1)
    def wait_all_lg(self):
        if self.lgq: self._wait_lg_idx(len(self.lgq) - 1)
    def __call__(self, text):
        tok = None
        for line in text.split("\n"):
            line = line.strip()
            if not line or line.startswith(";"): continue
            tok = self.emit(line)
        return tok
    def emit(self, line):
        i = Ins(line)
        if i.op == "s_waitcnt":
            m = re.search(r"vmcnt\((\d+)\)", line)
            if m:
                n = int(m.group(1)); self.vmq = self.vmq[max(0, len(self.vmq) - n):] if n else []
            m = re.search(r"lgkmcnt\((\d+)\)", line)
            if m:
                n = int(m.group(1))
                self.lgq = self.lgq[max(0, len(self.lgq) - n):] if n else []
            self.ins.append(i); return None
        if self.auto:
            touched = set(i.rd) | set(i.wr)
            for k in range(len(self.vmq) - 1, -1, -1):
                if self.vmq[k][1] & touched:
                    self._wait_vm_idx(k); break
            for k in range(len(self.lgq) - 1, -1, -1):
                if self.lgq[k][1] & touched:
                    self._wait_lg_idx(k); break
        if i.branch is not None:
            self.snap.setdefault(i.branch, []).append((list(self.vmq), list(self.lgq)))
        if i.cls == "label":
            pass
        self.ins.append(i)
        self.nid += 1
        if i.vm:
            self.vmq.append((self.nid, set(i.wr)))
            assert len(self.vmq) <= 63, "vmcnt overflow at " + line
        if i.lgkm:
            self.lgq.append((self.nid, set(i.wr), i.smem))
        return self.nid
    def restore_at(self, label):
        self.emit(label + ":")
        st = self.snap[label]
        assert len(st) >= 1
        self.vmq, self.lgq = list(st[0][0]), list(st[0][1])
    def finish(self):
        out = []
        hist = []
        pos = 0
        snaps = {}
        def need(i, hist, pos):
            req = 0
            rd, wr = set(i.rd), set(i.wr)
            for (p, ppos) in hist:
                dist = pos - ppos - 1
                w = 0
                pw = set(p.wr)
                if p.cls == "valu":
                    vw = {r for r in pw if r[0] in "va"}
                    sw = {r for r in pw if r[0] == "s"}
                    if i.cls == "mfma" and vw & rd: w = max(w, 2)
                    if p.trans and (vw & rd) and not (i.cls == "valu" and i.trans): w = max(w, 1)
                    if i.cls == "valu":
                        if (i.perm or i.dpp) and vw & rd: w = max(w, 2)
                        if i.rdlane and vw & rd: w = max(w, 1)
                        if sw & rd: w = max(w, 4 if i.rdlane else 2)
                        if i.dpp and (("s", 126) in sw): w = max(w, 5)
                    if i.cls == "vmem" and sw & rd: w = max(w, 5)
                    if i.cls in ("salu", "smem") and sw & rd: w = max(w, 1)
                    if i.cls == "mfma" and ("s", 126) in sw: w = max(w, 4)
                elif p.cls == "mfma":
                    big = p.passes == 8
                    if i.cls == "mfma":
                        if pw & set(i.srcAB): w = max(w, 12 if big else 8)
                        if pw & set(i.srcC):
                            if not (set(i.srcC) == pw and i.passes == p.passes): w = max(w, 10 if big else 6)
                        elif pw & wr: w = max(w, 10 if big else 6)
                    elif i.cls in ("valu", "vmem", "ds"):
                        if pw & (rd | wr): w = max(w, 12 if big else 8)
                        if i.cls == "valu" and set(p.srcC) & wr: w = max(w, 7 if big else 3)
                elif p.cls == "salu":
                    if ("s", 124) in pw and i.dma: w = max(w, 1)
                elif p.cls == "vmem":
                    if p.wide_store and set(p.storedata) & wr: w = max(w, 2 if i.cls == "valu" else 1)
                elif p.cls == "ds":
                    pass
                req = max(req, w - dist)
            return req
        labels_seen = {}
        prev_uncond = False
        for i in self.ins:
            if i.cls == "label":
                if prev_uncond: hist = []
                for (h, bpos) in snaps.get(i.label, []):
                    hist = hist + [(p, pos - (bpos - pp)) for (p, pp) in h]
                labels_seen[i.label] = len(out)
                out.append(i); prev_uncond = False
                continue
            r = need(i, hist, pos)
            while r > 0:
                n = min(r, 16)
                out.append(Ins(f"s_nop {n-1}")); pos += n; r -= n
            out.append(i)
            hist.append((i, pos))
            pos += i.nops if i.nops else 1
            hist = [(p, pp) for (p, pp) in hist if pos - pp <= 24]
            if i.branch is not None:
                if i.branch in labels_seen:
                    h2 = list(hist); p2 = pos
                    for j in out[labels_seen[i.branch] + 1: labels_seen[i.branch] + 30]:
                        if j.cls == "label": continue
                        assert need(j, h2, p2) <= 0, f"hazard across back edge at {j.text}"
                        p2 += j.nops if j.nops else 1
                else:
                    snaps.setdefault(i.branch, []).append((list(hist), pos))
            prev_uncond = i.op in ("s_branch", "s_endpgm", "s_setpc_b64")
        self.out = out
        return out
    def maxregs(self):
        mv = ma = ms = -1
        for i in self.ins:
            for (k, n) in i.rd + i.wr:
                if k == "v": mv = max(mv, n)
                elif k == "a": ma = max(ma, n)
                elif n < 102: ms = max(ms, n)
        return mv + 1, ma + 1, ms + 1
    def text(self):
        out = self.finish()
        L = [f".p2align 8", f".globl {self.name}", f".type {self.name},@function", f"{self.name}:"]
        for i in out:
            L.append(i.text if i.cls == "label" else "  " + i.text)
        return "\n".join(L) + "\n"
    def descriptor(self, force_vgpr=None):
        nv, na, ns = self.maxregs()
        acc = max(4, (nv + 3) // 4 * 4)
        tot = acc + na if na else nv
        if force_vgpr: tot = max(tot, force_vgpr)
        return f""".p2align 6
.amdhsa_kernel {self.name}
  .amdhsa_next_free_vgpr {tot}
  .amdhsa_next_free_sgpr {max(ns, 16)}
  .amdhsa_accum_offset {acc}
  .amdhsa_group_segment_fixed_size 0
  .amdhsa_kernarg_size 96
  .amdhsa_user_sgpr_count 2
  .amdhsa_user_sgpr_kernarg_segment_ptr 1
  .amdhsa_system_sgpr_workgroup_id_x 1
.end_amdhsa_kernel
"""

def v(n, c=1): return f"v{n}" if c == 1 else f"v[{n}:{n+c-1}]"
def a(n, c=1): return f"a{n}" if c == 1 else f"a[{n}:{n+c-1}]"
def s(n, c=1): return f"s{n}" if c == 1 else f"s[{n}:{n+c-1}]"
import struct
def f2u(x): return "0x%08x" % struct.unpack("<I", struct.pack("<f", x))[0]

class Alloc:
    def __init__(self, start=0): self.n = start
    def __call__(self, c=1, align=None):
        al = align or (2 if c == 2 else (4 if c >= 4 else 1))
        self.n = (self.n + al - 1) // al * al
        r = self.n; self.n += c; return r
```

```python
import sys, math
from asmlib import *

NAME = "adaLN_cond__sliding_local_dilated__glu_gated_geglu__prompt"
WS_MOD, WS_STATS, WS_XN, WS_O, WS_X1, WS_HH, WS_END = 0, 0x4000, 0x40000, 0x200000, 0x3C0000, 0x580000, 0xC80000
SZ_X, SZ_WQKV, SZ_WO, SZ_WG, SZ_WD, SZ_C, SZ_WMOD = 1835008, 1204224, 401408, 1605632, 1605632, 896, 2408448
KA = dict(x=0, wqkv=8, wo=16, wg=32, wu=40, wd=48, c=56, wmod=64, out=72, dbg=80, ws=88)
LOG2E = 1.4426950408889634
NEG = f2u(-1e30)

def srd(k, d, b, size):
    k(f"s_mov_b32 s{d}, s{b}\ns_and_b32 s{d+1}, s{b+1}, 0xffff\ns_mov_b32 s{d+2}, {size}\ns_mov_b32 s{d+3}, 0x20000")

def round_bf16(k, r, tmp=None):
    k(f"v_cvt_pk_bf16_f32 v{r}, v{r}, v{r}\nv_and_b32 v{r}, 0xffff0000, v{r}")

def ln_scalars(k, vsum_mean, vvar, vrinv):
    round_bf16(k, vsum_mean)
    round_bf16(k, vvar)
    k(f"v_add_f32 v{vvar}, {f2u(1e-5)}, v{vvar}")
    round_bf16(k, vvar)
    k(f"v_sqrt_f32 v{vvar}, v{vvar}")
    round_bf16(k, vvar)
    k(f"v_rcp_f32 v{vrinv}, v{vvar}")

def gen_p0():
    k = Kernel("p0_kernel")
    k("s_cmp_ge_u32 s2, 256\ns_cbranch_scc1 p0_end")
    k(f"s_load_dwordx2 s[4:5], s[0:1], {KA['x']}\ns_load_dwordx4 s[8:11], s[0:1], {KA['c']}\ns_load_dwordx2 s[6:7], s[0:1], {KA['ws']}")
    k("v_and_b32 v1, 63, v0\nv_lshrrev_b32 v2, 6, v0\nv_readfirstlane_b32 s20, v2")
    k("s_and_b32 s21, s2, 7\ns_lshr_b32 s22, s2, 3")
    k("s_waitcnt lgkmcnt(0)")
    srd(k, 24, 4, SZ_X); srd(k, 28, 8, SZ_C); srd(k, 32, 10, SZ_WMOD); srd(k, 36, 6, WS_END)
    k("s_cmp_eq_u32 s20, 0\ns_cbranch_scc1 p0_xn")
    k("s_cmp_ge_u32 s22, 21\ns_cbranch_scc1 p0_end")
    k("s_cmp_ge_u32 s20, 3\ns_cbranch_scc1 p0_end")
    k("s_mul_i32 s40, s21, 42\ns_lshl_b32 s41, s22, 1\ns_add_u32 s40, s40, s41\ns_add_u32 s40, s40, s20\ns_sub_u32 s40, s40, 1")
    k("v_lshlrev_b32 v3, 1, v1")
    C0, W0, ACC = 8, 16, 48
    for i in range(7):
        k(f"buffer_load_ushort v{C0+i}, v3, s[28:31], 0 offen offset:{128*i}")
    k("s_lshl_b32 s41, s40, 4\nv_mul_u32_u24 v4, 5376, v1\nv_add_u32 v4, s41, v4")
    for i in range(7):
        k(f"s_mov_b32 s42, {344064*i}\nbuffer_load_dwordx4 v[{W0+4*i}:{W0+4*i+3}], v4, s[32:35], s42 offen")
    for j in range(8): k(f"v_mov_b32 v{ACC+j}, 0")
    for i in range(7):
        c = C0 + i
        k(f"v_lshlrev_b32 v{c}, 16, v{c}")
        k(f"v_mul_f32 v5, {f2u(-LOG2E)}, v{c}\nv_exp_f32 v5, v5\nv_add_f32 v5, 1.0, v5\nv_rcp_f32 v5, v5\nv_mul_f32 v{c}, v{c}, v5")
        round_bf16(k, c)
    for i in range(7):
        for j in range(4):
            w = W0 + 4 * i + j
            k(f"v_lshlrev_b32 v6, 16, v{w}\nv_and_b32 v7, 0xffff0000, v{w}")
            k(f"v_fmac_f32 v{ACC+2*j}, v6, v{C0+i}\nv_fmac_f32 v{ACC+2*j+1}, v7, v{C0+i}")
    for mod in ("row_shr:1 row_mask:0xf", "row_shr:2 row_mask:0xf", "row_shr:4 row_mask:0xf", "row_shr:8 row_mask:0xf",
                "row_bcast:15 row_mask:0xa", "row_bcast:31 row_mask:0xc"):
        for j in range(8):
            k(f"v_add_f32_dpp v{ACC+j}, v{ACC+j}, v{ACC+j} {mod} bank_mask:0xf")
    k("s_sub_u32 s43, s40, 56\ns_cmp_lt_u32 s43, 56\ns_cselect_b32 s44, 1.0, 0")
    k("s_sub_u32 s43, s40, 224\ns_cmp_lt_u32 s43, 56\ns_cselect_b32 s44, 1.0, s44")
    for j in range(8):
        round_bf16(k, ACC + j)
        k(f"v_add_f32 v{ACC+j}, s44, v{ACC+j}")
        round_bf16(k, ACC + j)
    k("s_lshl_b32 s41, s40, 5\nv_mov_b32 v3, s41")
    k("v_cmp_eq_u32 vcc, 63, v1\ns_and_saveexec_b64 s[46:47], vcc")
    k(f"buffer_store_dwordx4 v[{ACC}:{ACC+3}], v3, s[36:39], 0 offen offset:{WS_MOD}")
    k(f"buffer_store_dwordx4 v[{ACC+4}:{ACC+7}], v3, s[36:39], 0 offen offset:{WS_MOD+16}")
    k("s_endpgm")
    k.restore_at("p0_xn")
    k("s_lshl_b32 s40, s21, 8\ns_lshl_b32 s41, s22, 3\ns_add_u32 s40, s40, s41")
    k("v_lshrrev_b32 v3, 3, v1\nv_and_b32 v4, 7, v1\nv_add_u32 v5, s40, v3")
    k("v_mul_u32_u24 v6, 896, v5\nv_lshl_add_u32 v6, v4, 4, v6")
    R0, F0 = 16, 48
    for i in range(7):
        k(f"buffer_load_dwordx4 v[{R0+4*i}:{R0+4*i+3}], v6, s[24:27], 0 offen offset:{128*i}")
    k("v_lshrrev_b32 v7, 5, v5\nv_mul_u32_u24 v7, 28672, v7\nv_lshl_add_u32 v7, v4, 9, v7\nv_and_b32 v8, 31, v5\nv_lshl_add_u32 v7, v8, 4, v7")
    k("v_mov_b32 v9, 0")
    for i in range(28):
        k(f"v_lshlrev_b32 v{F0+2*i}, 16, v{R0+i}\nv_and_b32 v{F0+2*i+1}, 0xffff0000, v{R0+i}")
        k(f"v_add_f32 v9, v9, v{F0+2*i}\nv_add_f32 v9, v9, v{F0+2*i+1}")
    def red8(r):
        for mod in ("quad_perm:[1,0,3,2]", "quad_perm:[2,3,0,1]", "row_half_mirror"):
            k(f"v_add_f32_dpp v{r}, v{r}, v{r} {mod} row_mask:0xf bank_mask:0xf")
    red8(9)
    k(f"v_mul_f32 v9, {f2u(1/448)}, v9\nv_mov_b32 v10, 0")
    for i in range(56):
        k(f"v_sub_f32 v11, v{F0+i}, v9\nv_fmac_f32 v10, v11, v11")
    red8(10)
    k(f"v_mul_f32 v10, {f2u(1/448)}, v10")
    ln_scalars(k, 9, 10, 12)
    for i in range(28):
        a0, a1 = F0 + 2 * i, F0 + 2 * i + 1
        k(f"v_sub_f32 v{a0}, v{a0}, v9\nv_sub_f32 v{a1}, v{a1}, v9\nv_cvt_pk_bf16_f32 v11, v{a0}, v{a1}")
        k(f"v_lshlrev_b32 v{a0}, 16, v11\nv_and_b32 v{a1}, 0xffff0000, v11")
        k(f"v_mul_f32 v{a0}, v{a0}, v12\nv_mul_f32 v{a1}, v{a1}, v12\nv_cvt_pk_bf16_f32 v{R0+i}, v{a0}, v{a1}")
    for i in range(7):
        k(f"s_mov_b32 s42, {WS_XN + 4096*i}\nbuffer_store_dwordx4 v[{R0+4*i}:{R0+4*i+3}], v7, s[36:39], s42 offen")
    k("p0_end:\ns_endpgm")
    return k, (256, 256, 0)

def apply_frag(k, x, T, tab, pre=None):
    for j in range(4):
        k(f"v_lshlrev_b32 v{T+2*j}, 16, v{x+j}\nv_and_b32 v{T+2*j+1}, 0xffff0000, v{x+j}")
    if pre:
        for j in range(4):
            k(f"v_pk_fma_f32 {v(T+2*j,2)}, {v(T+2*j,2)}, {v(pre[0],2)}, {v(pre[1],2)}")
    for j in range(4):
        k(f"v_pk_fma_f32 {v(T+2*j,2)}, {v(T+2*j,2)}, {v(tab+8+2*j,2)}, {v(tab+2*j,2)}")
    for j in range(4):
        k(f"v_cvt_pk_bf16_f32 v{x+j}, v{T+2*j}, v{T+2*j+1}")

def xlane_reduce(k, r, t, op, steps=(16, 32)):
    for st in steps:
        k(f"v_mov_b32 v{t}, v{r}\nv_permlane{st}_swap_b32 v{r}, v{t}\n{op} v{r}, v{r}, v{t}")

def gen_p1():
    k = Kernel("p1_kernel")
    L_W, L_TAB, L_Q = 0, 86016, 90112
    L_K = L_Q + 128 * 80; L_V = L_K + 144 * 80; L_END = L_V + 144 * 80
    k("s_cmp_ge_u32 s2, 256\ns_cbranch_scc1 p1_end")
    k(f"s_load_dwordx2 s[4:5], s[0:1], {KA['wqkv']}\ns_load_dwordx2 s[6:7], s[0:1], {KA['ws']}")
    k("v_and_b32 v1, 63, v0\nv_lshrrev_b32 v2, 6, v0\nv_readfirstlane_b32 s20, v2")
    k("s_and_b32 s21, s2, 7\ns_lshr_b32 s22, s2, 3")
    k("s_lshr_b32 s23, s22, 4\ns_and_b32 s22, s22, 15")
    k("s_lshl_b32 s21, s21, 3\ns_lshl_b32 s23, s23, 2\ns_add_u32 s21, s21, s23")
    k("s_and_b32 s40, s22, 1\ns_lshl_b32 s40, s40, 3")
    k("v_and_b32 v3, 15, v1\nv_lshrrev_b32 v4, 4, v1")
    k("v_lshrrev_b32 v5, 2, v3\nv_and_b32 v6, 3, v1")
    k("s_cmp_eq_u32 s20, 4\ns_cbranch_scc1 p1_halo")
    A = Alloc(8)
    vD = [A(), A(), A()]; vX = A(); vW0 = A(); vW1 = A(); vT = A(); t0 = A(); t1 = A(); t2 = A()
    BIAS = A(8); BIASF = A(4)
    TMP = A(8); TAB = [A(16), A(16)]; WF = [A(12), A(12)]; ACC = A(48); XF = A(112)
    k("s_mul_i32 s41, s22, 56\ns_and_b32 s41, s41, 0xfffffff0")
    for p in range(3):
        k(f"v_add_u32 v{t0}, {64*p}, v1\nv_mul_u32_u24 v{t1}, 43691, v{t0}\nv_lshrrev_b32 v{t1}, 19, v{t1}")
        k(f"v_mul_u32_u24 v{t2}, 12, v{t1}\nv_sub_u32 v{t0}, v{t0}, v{t2}")
        k(f"v_mul_u32_u24 v{vD[p]}, 2688, v{t1}\nv_lshrrev_b32 v{t1}, 2, v{t0}\nv_mul_u32_u24 v{t1}, 896, v{t1}")
        k(f"v_and_b32 v{t0}, 3, v{t0}\nv_lshl_add_u32 v{t1}, v{t0}, 4, v{t1}\nv_add3_u32 v{vD[p]}, v{vD[p]}, v{t1}, s41")
    k(f"v_lshlrev_b32 v{vX}, 4, v1")
    k("s_add_u32 s42, s21, s20\ns_mul_i32 s43, s42, 28672\n" + f"s_add_u32 s43, s43, {WS_XN}")
    k("s_mul_i32 s44, s20, 43008\ns_mul_i32 s45, s20, 3072")
    k("s_waitcnt lgkmcnt(0)")
    srd(k, 24, 4, SZ_WQKV); srd(k, 28, 6, WS_END)
    k(f"s_lshl_b32 s46, s20, 10\ns_add_u32 m0, s46, {L_TAB}")
    k(f"buffer_load_dwordx4 v{vX}, s[28:31], s46 offen lds")
    rtok = []
    for m in range(7):
        k(f"s_add_u32 s46, s44, {4*m*43008}")
        for p in range(3):
            k(f"s_add_u32 m0, s45, {4*m*3072 + p*1024 + L_W}")
            tk = k(f"buffer_load_dwordx4 v{vD[p]}, s[24:27], s46 offen lds")
        rtok.append(tk)
        k(f"s_add_u32 s47, s43, {4096*m}")
        for j in range(4):
            ks = 4 * m + j
            k(f"buffer_load_dwordx4 {v(XF+4*ks,4)}, v{vX}, s[28:31], s47 offen offset:{1024*j}")
    k(f"v_lshrrev_b32 v{t0}, 5, v1\nv_lshl_add_u32 v{t1}, v{t0}, 3, v5\nv_mul_u32_u24 v{vW0}, 192, v{t1}")
    k(f"v_and_b32 v{t1}, 1, v4\nv_lshl_add_u32 v{vW0}, v{t1}, 5, v{vW0}\nv_lshl_add_u32 v{vW0}, v6, 3, v{vW0}\nv_add_u32 v{vW0}, s40, v{vW0}")
    k(f"v_add_u32 v{vW1}, 43008, v{vW0}")
    k(f"v_lshlrev_b32 v{vT}, 5, v{t0}\nv_add_u32 v{vT}, {L_TAB}, v{vT}")
    k(f"v_lshlrev_b32 v{t0}, 2, v4\nv_sub_u32 v{t0}, v3, v{t0}\nv_mov_b32 v{t2}, {NEG}")
    for tp in range(2):
        for r in range(4):
            k(f"v_add_u32 v{t1}, {16-16*tp-r}, v{t0}\nv_and_b32 v{t1}, 0xfffffff1, v{t1}\nv_cmp_eq_u32 vcc, 0, v{t1}")
            k(f"v_cndmask_b32 v{BIAS+4*tp+r}, v{t2}, 0, vcc" if False else f"v_cndmask_b32_e64 v{BIAS+4*tp+r}, v{t2}, 0, vcc")
    k("s_cmp_eq_u32 s42, 0\ns_cselect_b64 vcc, -1, 0")
    for r in range(4):
        k(f"v_cndmask_b32 v{BIASF+r}, v{BIAS+r}, v{t2}, vcc")
    def rd_tab(ks):
        tb = TAB[ks & 1]
        for q in range(2):
            k(f"ds_read_b128 {v(tb+4*q,4)}, v{vT} offset:{64*ks+16*q}")
            k(f"ds_read_b128 {v(tb+8+4*q,4)}, v{vT} offset:{1792+64*ks+16*q}")
    def rd_w(ks):
        wf = WF[ks & 1]
        base, o = (vW0, ks * 3072) if ks < 14 else (vW1, (ks - 14) * 3072)
        for j in range(3):
            for q in range(2):
                k(f"ds_read_b64_tr_b16 {v(wf+4*j+2*q,2)}, v{base} offset:{o+768*q+64*j}")
    for m in range(7):
        k.wait_vm(rtok[m]); k("s_barrier")
        for j in range(4):
            ks = 4 * m + j
            if j == 0:
                rd_tab(ks); rd_w(ks)
            apply_frag(k, XF + 4 * ks, TMP, TAB[ks & 1])
            if j < 3:
                rd_tab(ks + 1); rd_w(ks + 1)
            for jj in range(3):
                c = "0" if ks == 0 else v(ACC + 16 * jj, 16)
                k(f"v_mfma_f32_32x32x16_bf16 {v(ACC+16*jj,16)}, {v(WF[ks&1]+4*jj,4)}, {v(XF+4*ks,4)}, {c}")
    PK = XF
    k(f"v_and_b32 v{t0}, 31, v1\ns_lshl_b32 s46, s20, 5\nv_add_u32 v{t0}, s46, v{t0}\nv_mul_u32_u24 v{t0}, 80, v{t0}")
    k(f"v_lshrrev_b32 v{t1}, 5, v1\nv_lshl_add_u32 v{t0}, v{t1}, 3, v{t0}\nv_add_u32 v{t0}, {L_Q}, v{t0}")
    for jj in range(3):
        for i in range(8):
            k(f"v_cvt_pk_bf16_f32 v{PK+8*jj+i}, v{ACC+16*jj+2*i}, v{ACC+16*jj+2*i+1}")
    k("s_mov_b32 exec_lo, 0")
    k(f"v_mov_b32 v{PK+6}, 0\nv_mov_b32 v{PK+7}, 0")
    k("s_mov_b32 exec_lo, -1")
    for jj, off in enumerate((0, L_K - L_Q + 16 * 80, L_V - L_Q + 16 * 80)):
        for i in range(4):
            k(f"ds_write_b64 v{t0}, {v(PK+8*jj+2*i,2)} offset:{off+16*i}")
    k.wait_all_lg(); k("s_barrier")
    QF = XF; KF = XF + 8; VF = XF + 20; S = XF + 32; P = XF + 48; O = XF + 56; MX = XF + 72
    k(f"v_add_u32 v{t0}, s46, v3\nv_mul_u32_u24 v{t0}, 80, v{t0}\nv_lshl_add_u32 v{t0}, v4, 4, v{t0}\nv_add_u32 v{t0}, {L_Q}, v{t0}")
    for qt in range(2): k(f"ds_read_b128 {v(QF+4*qt,4)}, v{t0} offset:{16*80*qt}")
    for t in range(3): k(f"ds_read_b128 {v(KF+4*t,4)}, v{t0} offset:{L_K-L_Q+16*80*t}")
    k(f"v_lshl_add_u32 v{t1}, v4, 2, v5\nv_add_u32 v{t1}, s46, v{t1}\nv_mul_u32_u24 v{t1}, 80, v{t1}\nv_lshl_add_u32 v{t1}, v6, 3, v{t1}\nv_add_u32 v{t1}, {L_V}, v{t1}")
    for dt in range(2):
        for t in range(3):
            k(f"ds_read_b64_tr_b16 {v(VF+6*dt+2*t,2)}, v{t1} offset:{16*80*t+32*dt}")
    for qt in range(2):
        for tp in range(2):
            b = BIASF if (qt == 0 and tp == 0) else BIAS + 4 * tp
            k(f"v_mfma_f32_16x16x32_bf16 {v(S+8*qt+4*tp,4)}, {v(KF+4*(qt+tp),4)}, {v(QF+4*qt,4)}, {v(b,4)}")
    k(f"s_mul_i32 s47, s22, 7\nv_add_u32 v{t2}, s47, v4\nv_lshrrev_b32 v{t0}, 1, v{t2}\nv_lshlrev_b32 v{t0}, 9, v{t0}")
    k(f"v_and_b32 v{t2}, 1, v{t2}\nv_lshl_add_u32 v{t0}, v{t2}, 3, v{t0}\nv_lshl_add_u32 v{t0}, v3, 4, v{t0}")
    k(f"s_add_u32 s43, s43, {WS_O-WS_XN}")
    cs = 28 ** -0.5 * LOG2E
    k(f"s_mov_b32 s48, {f2u(cs)}")
    for qt in range(2):
        s0 = S + 8 * qt; mx = MX + 2 * qt; tt = mx + 1
        k(f"v_max3_f32 v{mx}, v{s0}, v{s0+1}, v{s0+2}\nv_max3_f32 v{mx}, v{mx}, v{s0+3}, v{s0+4}\nv_max3_f32 v{mx}, v{mx}, v{s0+5}, v{s0+6}\nv_max_f32 v{mx}, v{mx}, v{s0+7}")
        xlane_reduce(k, mx, tt, "v_max_f32")
        k(f"v_mul_f32 v{mx}, s48, v{mx}")
        for r in range(8): k(f"v_fma_f32 v{s0+r}, v{s0+r}, s48, -v{mx}")
        for r in range(8): k(f"v_exp_f32 v{s0+r}, v{s0+r}")
        k(f"v_add_f32 v{mx}, v{s0}, v{s0+1}")
        for r in range(2, 8): k(f"v_add_f32 v{mx}, v{mx}, v{s0+r}")
        xlane_reduce(k, mx, tt, "v_add_f32")
        k(f"v_rcp_f32 v{mx}, v{mx}")
        for r in range(8): k(f"v_mul_f32 v{s0+r}, v{s0+r}, v{mx}")
        for r in range(4): k(f"v_cvt_pk_bf16_f32 v{P+4*qt+r}, v{s0+2*r}, v{s0+2*r+1}")
        for dt in range(2):
            k(f"v_mfma_f32_16x16x32_bf16 {v(O+8*qt+4*dt,4)}, {v(VF+6*dt+2*qt,4)}, {v(P+4*qt,4)}, 0")
    for qt in range(2):
        for dt in range(2):
            o = O + 8 * qt + 4 * dt
            k(f"v_cvt_pk_bf16_f32 v{o}, v{o}, v{o+1}\nv_cvt_pk_bf16_f32 v{o+1}, v{o+2}, v{o+3}")
    for qt in range(2):
        k(f"buffer_store_dwordx2 {v(O+8*qt,2)}, v{t0}, s[28:31], s43 offen offset:{256*qt}")
    k("s_mov_b32 exec_hi, 0xffff")
    for qt in range(2):
        k(f"buffer_store_dwordx2 {v(O+8*qt+4,2)}, v{t0}, s[28:31], s43 offen offset:{256*qt+1024}")
    k("s_endpgm")
    k.restore_at("p1_halo")
    HW = [WF[0], WF[0] + 16]
    HW = [XF + 64, XF + 80]
    k("s_sub_u32 s42, s21, 1\ns_max_i32 s42, s42, 0\ns_mul_i32 s43, s42, 28672\n" + f"s_add_u32 s43, s43, {WS_XN+256}")
    k(f"v_lshlrev_b32 v{vX}, 9, v4\nv_lshl_add_u32 v{vX}, v3, 4, v{vX}")
    k("s_waitcnt lgkmcnt(0)")
    srd(k, 28, 6, WS_END)
    for s_ in range(14):
        k(f"s_add_u32 s47, s43, {2048*s_}\nbuffer_load_dwordx4 {v(XF+4*s_,4)}, v{vX}, s[28:31], s47 offen")
    k(f"v_lshl_add_u32 v{t1}, v4, 3, v5\nv_mul_u32_u24 v{vW0}, 192, v{t1}\nv_lshl_add_u32 v{vW0}, v6, 3, v{vW0}\nv_add_u32 v{vW0}, s40, v{vW0}")
    k(f"v_add_u32 v{vW1}, 43008, v{vW0}")
    k(f"v_lshlrev_b32 v{vT}, 5, v4\nv_add_u32 v{vT}, {L_TAB}, v{vT}")
    for m in range(7):
        k("s_barrier")
        for j in range(2):
            s_ = 2 * m + j
            tb = TAB[j]; wf = HW[j]
            for q in range(2):
                k(f"ds_read_b128 {v(tb+4*q,4)}, v{vT} offset:{128*s_+16*q}")
                k(f"ds_read_b128 {v(tb+8+4*q,4)}, v{vT} offset:{1792+128*s_+16*q}")
            base, o = (vW0, s_ * 6144) if s_ < 7 else (vW1, (s_ - 7) * 6144)
            for u in range(4):
                for q in range(2):
                    k(f"ds_read_b64_tr_b16 {v(wf+4*u+2*q,2)}, v{base} offset:{o+768*q+64+32*u}")
        for j in range(2):
            s_ = 2 * m + j
            apply_frag(k, XF + 4 * s_, TMP, TAB[j])
            for u in range(4):
                c = "0" if s_ == 0 else v(ACC + 4 * u, 4)
                k(f"v_mfma_f32_16x16x32_bf16 {v(ACC+4*u,4)}, {v(HW[j]+4*u,4)}, {v(XF+4*s_,4)}, {c}")
    k(f"v_mul_u32_u24 v{t0}, 80, v3\nv_lshl_add_u32 v{t0}, v4, 3, v{t0}\nv_add_u32 v{t0}, {L_K}, v{t0}")
    for u in range(4):
        o = ACC + 4 * u
        k(f"v_cvt_pk_bf16_f32 v{o}, v{o}, v{o+1}\nv_cvt_pk_bf16_f32 v{o+1}, v{o+2}, v{o+3}")
        k(f"ds_write_b64 v{t0}, {v(o,2)} offset:{(L_V-L_K)*(u>>1)+32*(u&1)}")
    k.wait_all_lg(); k("s_barrier")
    k("p1_end:\ns_endpgm")
    return k, (256, 320, L_END)

def gen_g64(which):
    p2 = which == 2
    k = Kernel(f"p{which}_kernel")
    KS = 28 if p2 else 112; KSW = KS // 4
    DEPTH = 7 if p2 else 8
    RING = 16384; WREG = RING + 2048
    wname, wsz = ("wo", SZ_WO) if p2 else ("wd", SZ_WD)
    ABASE = WS_O if p2 else WS_HH
    end = f"p{which}_end"
    k(f"s_cmp_ge_u32 s2, 224\ns_cbranch_scc1 {end}")
    k(f"s_load_dwordx2 s[4:5], s[0:1], {KA[wname]}\ns_load_dwordx2 s[6:7], s[0:1], {KA['ws']}\ns_load_dwordx2 s[8:9], s[0:1], {KA['x' if p2 else 'out']}")
    k("v_and_b32 v1, 63, v0\nv_lshrrev_b32 v2, 6, v0\nv_readfirstlane_b32 s20, v2")
    k("s_and_b32 s21, s2, 7\ns_lshr_b32 s22, s2, 3")
    k("s_mul_i32 s23, s22, 37\ns_lshr_b32 s23, s23, 8\ns_mul_i32 s40, s23, 7\ns_sub_u32 s22, s22, s40")
    k("s_lshl_b32 s21, s21, 3\ns_lshl_b32 s23, s23, 1\ns_add_u32 s21, s21, s23")
    k("s_and_b32 s40, s20, 1\ns_lshr_b32 s41, s20, 1")
    k("s_add_u32 s42, s21, s40\ns_xor_b32 s43, s40, 1\ns_add_u32 s43, s21, s43")
    A = Alloc(2)
    vL16 = A(); vD = A(); vWa = [A(), A()]; t0 = A(); t1 = A(); t2 = A(); vHF = A()
    G = A(16); XR = A(8); WF = [A(8), A(8)]; ACC = A(64); AF = A(8 * DEPTH); RD = AF
    assert 8 * DEPTH >= 48
    k(f"v_lshlrev_b32 v{vL16}, 4, v1\nv_lshrrev_b32 v{vHF}, 5, v1")
    k(f"s_mul_i32 s44, s20, {KSW*1024}\ns_add_u32 s44, s44, {ABASE}")
    k(f"s_mul_i32 s45, s42, {KS*1024}\ns_add_u32 s45, s45, s44\ns_mul_i32 s46, s43, {KS*1024}\ns_add_u32 s46, s46, s44")
    k(f"v_lshrrev_b32 v{t0}, 3, v1\nv_mul_u32_u24 v{vD}, 896, v{t0}\nv_lshlrev_b32 v{t0}, 1, v{t0}\nv_and_b32 v{t0}, 4, v{t0}")
    k(f"v_and_b32 v{t1}, 7, v1\nv_xor_b32 v{t1}, v{t1}, v{t0}\nv_lshl_add_u32 v{vD}, v{t1}, 4, v{vD}")
    k(f"s_mul_i32 s47, s20, {KSW*16*896}\ns_lshl_b32 s48, s22, 7\ns_add_u32 s47, s47, s48")
    k(f"s_mul_i32 s49, s20, {WREG}")
    k("s_waitcnt lgkmcnt(0)")
    srd(k, 24, 4, wsz); srd(k, 28, 6, WS_END); srd(k, 32, 8, SZ_X)
    wtok = {}
    def issue(i):
        sl = i % DEPTH
        for h in range(2):
            k(f"s_add_u32 s50, s47, {(16*i+8*h)*896}\ns_add_u32 m0, s49, {sl*2048+h*1024}")
            wtok[i] = k(f"buffer_load_dwordx4 v{vD}, s[24:27], s50 offen lds")
        for b in range(2):
            if i % 4 == 0: k(f"s_add_u32 s{51+b}, s{45+b}, {1024*i}")
            k(f"buffer_load_dwordx4 {v(AF+8*sl+4*b,4)}, v{vL16}, s[28:31], s{51+b} offen offset:{1024*(i%4)}")
    PRE = DEPTH if p2 else DEPTH - 1
    for i in range(min(PRE, KSW)): issue(i)
    k("s_lshl_b32 s53, s22, 6\ns_lshl_b32 s54, s41, 5\ns_add_u32 s53, s53, s54")
    k(f"s_lshl_b32 s54, s53, 2\ns_add_u32 s54, s54, {WS_MOD + (896 if p2 else 2240)*4}")
    k(f"v_lshlrev_b32 v{t2}, 4, v{vHF}")
    def epi_loads():
        for i in range(4):
            k(f"buffer_load_dwordx4 {v(G+4*i,4)}, v{t2}, s[28:31], s54 offen offset:{32*i}")
        k(f"s_mul_i32 s55, s42, 28672\ns_lshl_b32 s56, s53, 6\ns_add_u32 s55, s55, s56\ns_add_u32 s55, s55, {WS_X1}")
        k(f"v_lshrrev_b32 v{t0}, 2, v1\nv_mul_u32_u24 v{t0}, 896, v{t0}\nv_and_b32 v{t1}, 3, v1\nv_lshl_add_u32 v2, v{t1}, 4, v{t0}" if False else "")
        if p2:
            k(f"s_mul_i32 s57, s42, 28672\ns_lshl_b32 s58, s53, 1\ns_add_u32 s57, s57, s58")
            for h in range(2):
                k(f"s_add_u32 s58, s57, {16*896*h}\ns_add_u32 m0, s49, {RING+1024*h}")
                tk = k(f"buffer_load_dwordx4 v{vRM}, s[32:35], s58 offen lds")
            return tk
        else:
            for h in range(2):
                k(f"buffer_load_dwordx4 {v(XR+4*h,4)}, v{vL16}, s[28:31], s55 offen offset:{1024*h}")
    vRM = A()
    k(f"v_lshrrev_b32 v{t0}, 2, v1\nv_mul_u32_u24 v{t0}, 896, v{t0}\nv_and_b32 v{t1}, 3, v1\nv_lshl_add_u32 v{vRM}, v{t1}, 4, v{t0}")
    xtok = epi_loads() if p2 else None
    k(f"v_and_b32 v{t0}, 15, v1\nv_lshrrev_b32 v{t0}, 2, v{t0}")
    k(f"v_lshl_add_u32 v{t1}, v{vHF}, {3 if p2 else 2}, v{t0}\nv_lshlrev_b32 v{vWa[0]}, 7, v{t1}")
    k(f"v_lshrrev_b32 v{t0}, 1, v{t0}\nv_xor_b32 v{t0}, s41, v{t0}\nv_lshl_add_u32 v{vWa[0]}, v{t0}, 6, v{vWa[0]}")
    k(f"v_and_b32 v{t0}, 16, v1\nv_lshl_add_u32 v{vWa[0]}, v{t0}, 1, v{vWa[0]}\nv_and_b32 v{t0}, 3, v1\nv_lshl_add_u32 v{vWa[0]}, v{t0}, 3, v{vWa[0]}")
    k(f"v_add_u32 v{vWa[0]}, s49, v{vWa[0]}\nv_xor_b32 v{vWa[1]}, 64, v{vWa[0]}")
    second = 512 if p2 else 1024
    def rd_w(i):
        k.wait_vm(wtok[i])
        sl = i % DEPTH
        for a_ in range(2):
            for q in range(2):
                k(f"ds_read_b64_tr_b16 {v(WF[i&1]+4*a_+2*q,2)}, v{vWa[a_]} offset:{sl*2048+second*q}")
    rd_w(0)
    for i in range(KSW):
        if i + 1 < KSW: rd_w(i + 1)
        sl = i % DEPTH
        for a_ in range(2):
            for b in range(2):
                c = "0" if i == 0 else v(ACC + 32 * a_ + 16 * b, 16)
                k(f"v_mfma_f32_32x32x16_bf16 {v(ACC+32*a_+16*b,16)}, {v(WF[i&1]+4*a_,4)}, {v(AF+8*sl+4*b,4)}, {c}")
        nxt = i + PRE
        if nxt < KSW: issue(nxt)
        if (not p2) and i == KSW - PRE: epi_loads()
    k(f"v_add_u32 v{t0}, s49, v{vL16}")
    for j in range(1, 4):
        for i in range(4):
            k(f"ds_write_b128 v{t0}, {v(ACC+16*j+4*i,4)} offset:{(j-1)*4096+1024*i}")
    k.wait_all_lg(); k("s_barrier")
    for j in range(1, 4):
        k(f"s_xor_b32 s50, s20, {j}\ns_mul_i32 s50, s50, {WREG}\nv_add_u32 v{t1}, s50, v{vL16}")
        for i in range(4):
            k(f"ds_read_b128 {v(RD+16*(j-1)+4*i,4)}, v{t1} offset:{(j-1)*4096+1024*i}")
    k(f"v_and_b32 v{t0}, 31, v1\nv_lshlrev_b32 v{t0}, 6, v{t0}\nv_lshl_add_u32 v{t0}, v{vHF}, 3, v{t0}\nv_add_u32 v{t0}, s49, v{t0}")
    if p2:
        k.wait_vm(xtok)
        for i in range(4):
            k(f"ds_read_b64 {v(XR+2*i,2)}, v{t0} offset:{RING+16*i}")
    for j in range(3):
        for i in range(8):
            k(f"v_pk_add_f32 {v(ACC+2*i,2)}, {v(ACC+2*i,2)}, {v(RD+16*j+2*i,2)}")
    T = ACC + 16; O = ACC + 32
    for i in range(8):
        a0 = ACC + 2 * i
        k(f"v_cvt_pk_bf16_f32 v{t1}, v{a0}, v{a0+1}\nv_lshlrev_b32 v{a0}, 16, v{t1}\nv_and_b32 v{a0+1}, 0xffff0000, v{t1}")
        k(f"v_pk_mul_f32 {v(a0,2)}, {v(a0,2)}, {v(G+2*i,2)}")
        k(f"v_cvt_pk_bf16_f32 v{t1}, v{a0}, v{a0+1}\nv_lshlrev_b32 v{a0}, 16, v{t1}\nv_and_b32 v{a0+1}, 0xffff0000, v{t1}")
        k(f"v_lshlrev_b32 v{T}, 16, v{XR+i}\nv_and_b32 v{T+1}, 0xffff0000, v{XR+i}")
        k(f"v_pk_add_f32 {v(a0,2)}, {v(a0,2)}, {v(T,2)}")
        k(f"v_cvt_pk_bf16_f32 v{O+i}, v{a0}, v{a0+1}")
    if p2:
        for h in range(2):
            k(f"buffer_store_dwordx4 {v(O+4*h,4)}, v{vL16}, s[28:31], s55 offen offset:{1024*h}")
        SS = T; M2 = T + 1
        for i in range(8):
            a0 = ACC + 2 * i
            k(f"v_lshlrev_b32 v{a0}, 16, v{O+i}\nv_and_b32 v{a0+1}, 0xffff0000, v{O+i}")
        k(f"v_add_f32 v{SS}, v{ACC}, v{ACC+1}")
        for i in range(2, 16): k(f"v_add_f32 v{SS}, v{SS}, v{ACC+i}")
        xlane_reduce(k, SS, t1, "v_add_f32", (32,))
        k(f"v_mul_f32 v{t2}, {f2u(1/32)}, v{SS}\nv_mov_b32 v{M2}, 0")
        for i in range(16): k(f"v_sub_f32 v{t1}, v{ACC+i}, v{t2}\nv_fmac_f32 v{M2}, v{t1}, v{t1}")
        xlane_reduce(k, M2, t1, "v_add_f32", (32,))
        k(f"s_mul_i32 s56, s42, {14*256}\ns_lshl_b32 s57, s53, 3\ns_add_u32 s56, s56, s57\ns_add_u32 s56, s56, {WS_STATS}")
        k(f"v_lshlrev_b32 v{t1}, 3, v1\ns_mov_b32 exec_hi, 0")
        k(f"buffer_store_dwordx2 {v(SS,2)}, v{t1}, s[28:31], s56 offen")
    else:
        for i in range(4):
            k(f"ds_write_b64 v{t0}, {v(O+2*i,2)} offset:{RING+16*i}")
        k(f"v_add_u32 v{t1}, s49, v{vL16}")
        k.wait_all_lg()
        for h in range(2):
            k(f"ds_read_b128 {v(ACC+4*h,4)}, v{t1} offset:{RING+1024*h}")
        k(f"s_mul_i32 s57, s42, 28672\ns_lshl_b32 s58, s53, 1\ns_add_u32 s57, s57, s58")
        for h in range(2):
            k(f"s_add_u32 s58, s57, {16*896*h}\nbuffer_store_dwordx4 {v(ACC+4*h,4)}, v{vRM}, s[32:35], s58 offen")
    k(f"{end}:\ns_endpgm")
    return k, (224, 256, 4 * WREG)

def gen_p3():
    k = Kernel("p3_kernel")
    L_G, L_U, L_TAB = 0, 57344, 114688
    L_END = L_TAB + 4096
    k("s_cmp_ge_u32 s2, 224\ns_cbranch_scc1 p3_end")
    k(f"s_load_dwordx4 s[4:7], s[0:1], {KA['wg']}\ns_load_dwordx2 s[8:9], s[0:1], {KA['ws']}")
    k("v_and_b32 v1, 63, v0\nv_lshrrev_b32 v2, 6, v0\nv_readfirstlane_b32 s20, v2")
    k("s_and_b32 s21, s2, 7\ns_lshr_b32 s22, s2, 3")
    k("s_lshl_b32 s21, s21, 3\ns_add_u32 s21, s21, s20")
    A = Alloc(2)
    vL16 = A(); vDG = A(); vDU = A(); vW = [A(), A(), A(), A()]; vT = A(); t0 = A(); t1 = A(); t2 = A(); vHF = A()
    RINV = A(2); NMR = A(2); ST = A(14)
    TMP = A(8); TAB = [A(16), A(16)]; WF = [A(16), A(16)]; ACC = A(64); XF = A(64)
    k(f"v_lshlrev_b32 v{vL16}, 4, v1\nv_lshrrev_b32 v{vHF}, 5, v1")
    k(f"v_lshrrev_b32 v{t0}, 3, v1\nv_mul_u32_u24 v{t1}, 3584, v{t0}\nv_and_b32 v{t0}, 2, v{t0}\nv_and_b32 v{t2}, 7, v1\nv_xor_b32 v{t2}, v{t2}, v{t0}")
    k(f"v_lshl_add_u32 v{vDG}, v{t2}, 4, v{t1}\nv_xor_b32 v{t2}, 4, v{t2}\nv_lshl_add_u32 v{vDU}, v{t2}, 4, v{t1}")
    k(f"s_mul_i32 s40, s20, {8*3584}\ns_lshl_b32 s41, s22, 7\ns_add_u32 s40, s40, s41")
    k("s_lshl_b32 s42, s20, 10")
    k(f"s_mul_i32 s43, s21, 28672\ns_add_u32 s43, s43, {WS_X1}")
    k(f"s_mul_i32 s44, s21, {14*256}\ns_add_u32 s44, s44, {WS_STATS}")
    k(f"v_and_b32 v{t0}, 31, v1\nv_lshlrev_b32 v{t0}, 3, v{t0}\nv_mul_u32_u24 v{t1}, {7*256}, v{vHF}\nv_add_u32 v{t0}, v{t0}, v{t1}")
    k("s_waitcnt lgkmcnt(0)")
    srd(k, 24, 4, SZ_WG); srd(k, 28, 6, SZ_WG); srd(k, 32, 8, WS_END)
    for g in range(7):
        k(f"buffer_load_dwordx2 {v(ST+2*g,2)}, v{t0}, s[32:35], s44 offen offset:{256*g}")
    k(f"s_and_b32 s45, s42, 0xfff\ns_add_u32 m0, s45, {L_TAB}\ns_add_u32 s45, s45, {WS_MOD+1344*4}")
    k(f"buffer_load_dwordx4 v{vL16}, s[32:35], s45 offen lds")
    wtok = {}
    def issue_w(m):
        k(f"s_add_u32 s46, s40, {64*3584*m}\ns_add_u32 m0, s42, {L_G+8192*m}")
        k(f"buffer_load_dwordx4 v{vDG}, s[24:27], s46 offen lds")
        k(f"s_add_u32 m0, s42, {L_U+8192*m}")
        wtok[m] = k(f"buffer_load_dwordx4 v{vDU}, s[28:31], s46 offen lds")
    def issue_x(m):
        k(f"s_add_u32 s47, s43, {4096*m}")
        for j in range(4):
            k(f"buffer_load_dwordx4 {v(XF+16*(m%4)+4*j,4)}, v{vL16}, s[32:35], s47 offen offset:{1024*j}")
    for m in range(4):
        issue_w(m); issue_x(m)
    for m in range(4, 7): issue_w(m)
    k(f"v_and_b32 v{t0}, 15, v1\nv_lshrrev_b32 v{t0}, 2, v{t0}\nv_lshl_add_u32 v{t1}, v{vHF}, 2, v{t0}\nv_lshlrev_b32 v{t1}, 7, v{t1}")
    k(f"v_and_b32 v{t2}, 3, v1\nv_lshl_add_u32 v{t1}, v{t2}, 3, v{t1}")
    k(f"v_bfe_u32 v{t2}, v1, 4, 1\nv_lshrrev_b32 v{t0}, 1, v{t0}\nv_lshl_add_u32 v{t0}, v{t2}, 1, v{t0}")
    k(f"v_mul_u32_u24 v{t2}, {L_U}, v{t2}\nv_add_u32 v{t1}, v{t1}, v{t2}\nv_lshl_add_u32 v{vW[0]}, v{t0}, 5, v{t1}")
    for s_ in range(1, 4): k(f"v_xor_b32 v{vW[s_]}, {32*s_}, v{vW[0]}")
    k(f"v_lshlrev_b32 v{vT}, 4, v{vHF}\nv_add_u32 v{vT}, {L_TAB}, v{vT}")
    k(f"v_add_f32 v{t0}, v{ST}, v{ST+2}")
    for g in range(2, 7): k(f"v_add_f32 v{t0}, v{t0}, v{ST+2*g}")
    xlane_reduce(k, t0, t1, "v_add_f32", (32,))
    k(f"v_mul_f32 v{t0}, {f2u(1/448)}, v{t0}\nv_mov_b32 v{t2}, 0\ns_mov_b32 s48, {f2u(1/32)}\ns_mov_b32 s49, {f2u(32.0)}")
    for g in range(7):
        k(f"v_fma_f32 v{t1}, v{ST+2*g}, s48, -v{t0}\nv_mul_f32 v{t1}, v{t1}, v{t1}\nv_fma_f32 v{t1}, v{t1}, s49, v{ST+2*g+1}\nv_add_f32 v{t2}, v{t2}, v{t1}")
    xlane_reduce(k, t2, t1, "v_add_f32", (32,))
    k(f"v_mul_f32 v{t2}, {f2u(1/448)}, v{t2}")
    ln_scalars(k, t0, t2, RINV)
    k(f"v_mov_b32 v{RINV+1}, v{RINV}\nv_mul_f32 v{NMR}, v{t0}, v{RINV}\nv_sub_f32 v{NMR}, 0, v{NMR}\nv_mov_b32 v{NMR+1}, v{NMR}")
    def rd_tab(ks):
        tb = TAB[ks & 1]
        for q in range(2):
            k(f"ds_read_b128 {v(tb+4*q,4)}, v{vT} offset:{64*ks+32*q}")
            k(f"ds_read_b128 {v(tb+8+4*q,4)}, v{vT} offset:{1792+64*ks+32*q}")
    def rd_w(ks):
        wf = WF[ks & 1]
        for s_ in range(4):
            for q in range(2):
                k(f"ds_read_b64_tr_b16 {v(wf+4*s_+2*q,2)}, v{vW[s_]} offset:{2048*ks+1024*q}")
    for m in range(7):
        k.wait_vm(wtok[m]); k("s_barrier")
        for j in range(4):
            ks = 4 * m + j
            x = XF + 16 * (m % 4) + 4 * j
            if j == 0:
                rd_tab(ks); rd_w(ks)
            apply_frag(k, x, TMP, TAB[ks & 1], (RINV, NMR))
            if j < 3:
                rd_tab(ks + 1); rd_w(ks + 1)
            for s_ in range(4):
                c = "0" if ks == 0 else v(ACC + 16 * s_, 16)
                k(f"v_mfma_f32_32x32x16_bf16 {v(ACC+16*s_,16)}, {v(WF[ks&1]+4*s_,4)}, {v(x,4)}, {c}")
        if m + 4 < 7: issue_x(m + 4)
    c0 = -2.0 * math.sqrt(2.0 / math.pi) * LOG2E
    c1 = c0 * 0.044715
    k(f"s_mov_b32 s50, {f2u(c0)}\ns_mov_b32 s51, {f2u(c0)}\ns_mov_b32 s52, {f2u(c1)}\ns_mov_b32 s53, {f2u(c1)}")
    k(f"v_mov_b32 v{RINV}, s50\nv_mov_b32 v{RINV+1}, s50")
    k(f"s_mul_i32 s54, s21, {112*1024}\ns_lshl_b32 s55, s22, 12\ns_add_u32 s54, s54, s55\ns_add_u32 s54, s54, {WS_HH}")
    for s_ in range(4):
        g0 = ACC + 16 * s_; u0 = g0 + 8; T = TAB[s_ & 1]; O = XF + 4 * s_
        for i in range(4): k(f"v_pk_mul_f32 {v(T+2*i,2)}, {v(g0+2*i,2)}, {v(g0+2*i,2)}")
        for i in range(4): k(f"v_pk_fma_f32 {v(T+2*i,2)}, {v(T+2*i,2)}, s[52:53], {v(RINV,2)}")
        for i in range(4): k(f"v_pk_mul_f32 {v(T+2*i,2)}, {v(T+2*i,2)}, {v(g0+2*i,2)}")
        for i in range(8): k(f"v_exp_f32 v{T+i}, v{T+i}")
        for i in range(4): k(f"v_pk_mul_f32 {v(g0+2*i,2)}, {v(g0+2*i,2)}, {v(u0+2*i,2)}")
        for i in range(8): k(f"v_add_f32 v{T+i}, 1.0, v{T+i}")
        for i in range(8): k(f"v_rcp_f32 v{T+i}, v{T+i}")
        for i in range(4): k(f"v_pk_mul_f32 {v(g0+2*i,2)}, {v(g0+2*i,2)}, {v(T+2*i,2)}")
        for i in range(4): k(f"v_cvt_pk_bf16_f32 v{O+i}, v{g0+2*i}, v{g0+2*i+1}")
        k(f"buffer_store_dwordx4 {v(O,4)}, v{vL16}, s[32:35], s54 offen offset:{1024*s_}")
    k("p3_end:\ns_endpgm")
    return k, (224, 512, L_END)

def main():
    ks = [gen_p0(), gen_p1(), gen_g64(2), gen_p3(), gen_g64(4)]
    ref = open(f"cdna_kernels/{NAME}.s.ref").read().splitlines()
    hdr = [l for l in ref if l.startswith(";") and "@launch" not in l and "Override launch" not in l and "grid=ceil" not in l]
    out = "\n".join(hdr) + "\n"
    for k, (g, b, lds) in ks:
        out += f"; @launch kernel={k.name} grid=({g},1,1) block=({b},1,1) lds={lds}\n"
    out += '.amdgcn_target "amdgcn-amd-amdhsa--gfx950"\n.text\n'
    for k, _ in ks: out += k.text()
    out += '.section .rodata,"a"\n'
    for k, _ in ks:
        out += k.descriptor()
        print(k.name, "regs v/a/s", k.maxregs(), "instrs", len(k.out), file=sys.stderr)
    path = sys.argv[1] if len(sys.argv) > 1 else f"cdna_kernels/{NAME}.s"
    open(path, "w").write(out)
main()
```

```python
import re

TRANS = ("v_exp_", "v_log_", "v_rcp_", "v_rsq_", "v_sqrt_", "v_sin_", "v_cos_")

def split_ops(s):
    out, depth, cur = [], 0, ""
    for ch in s:
        if ch in "[(": depth += 1
        if ch in "])": depth -= 1
        if ch == "," and depth == 0:
            out.append(cur.strip()); cur = ""
        else:
            cur += ch
    if cur.strip(): out.append(cur.strip())
    return out

_reg_re = re.compile(r"^(-|\|)?(?:abs\()?([vas])(?:(\d+)|\[(\d+):(\d+)\])")
def regs_of(op):
    op = op.strip()
    tok = op.split()[0] if op else op
    if tok in ("vcc",): return [("s", 106), ("s", 107)]
    if tok == "vcc_lo": return [("s", 106)]
    if tok == "vcc_hi": return [("s", 107)]
    if tok == "exec": return [("s", 126), ("s", 127)]
    if tok == "exec_lo": return [("s", 126)]
    if tok == "exec_hi": return [("s", 127)]
    if tok == "m0": return [("s", 124)]
    m = _reg_re.match(tok)
    if not m: return []
    k = m.group(2)
    if m.group(3) is not None: return [(k, int(m.group(3)))]
    return [(k, i) for i in range(int(m.group(4)), int(m.group(5)) + 1)]

class Ins:
    __slots__ = ("text", "op", "cls", "rd", "wr", "srcC", "srcAB", "passes", "trans", "dpp", "perm",
                 "rdlane", "vm", "lgkm", "wide_store", "dma", "smem", "tok", "label", "branch", "nops", "storedata")
    def __init__(self, text):
        self.text = text
        self.rd, self.wr, self.srcC, self.srcAB, self.storedata = [], [], [], [], []
        self.passes = 0; self.trans = False; self.dpp = False; self.perm = False; self.rdlane = False
        self.vm = False; self.lgkm = False; self.wide_store = False; self.dma = False; self.smem = False
        self.tok = None; self.label = None; self.branch = None; self.nops = 0
        t = text.split(";")[0].strip()
        if t.endswith(":"):
            self.op = "label"; self.cls = "label"; self.label = t[:-1]; return
        sp = t.split(None, 1)
        op = sp[0]; self.op = op
        ops = split_ops(sp[1]) if len(sp) > 1 else []
        R = lambda i: regs_of(ops[i]) if i < len(ops) else []
        allfrom = lambda i: [r for o in ops[i:] for r in regs_of(o)]
        if op.startswith("v_mfma"):
            self.cls = "mfma"; self.wr = R(0); self.srcAB = R(1) + R(2); self.srcC = R(3)
            self.rd = self.srcAB + self.srcC
            self.passes = 8 if "32x32" in op else 4
        elif op.startswith("v_"):
            self.cls = "valu"
            self.trans = op.startswith(TRANS)
            self.dpp = op.endswith("_dpp") or "row_" in t or "quad_perm" in t
            if op.startswith("v_cmp"):
                self.wr = R(0); self.rd = allfrom(1)
            elif op.startswith("v_permlane") and "swap" in op:
                self.perm = True; self.wr = R(0) + R(1); self.rd = R(0) + R(1)
            elif op.startswith(("v_readfirstlane", "v_readlane")):
                self.rdlane = True; self.wr = R(0); self.rd = allfrom(1)
            elif op.startswith(("v_add_co", "v_sub_co", "v_addc_co", "v_subb_co")):
                self.wr = R(0) + R(1); self.rd = allfrom(2)
            elif op.startswith(("v_fmac", "v_dot2c", "v_pk_fmac", "v_writelane")) or self.dpp:
                self.wr = R(0); self.rd = allfrom(0)
            elif op == "v_nop":
                pass
            else:
                self.wr = R(0); self.rd = allfrom(1)
                if op.startswith("v_cndmask") and len(ops) == 3: self.rd += regs_of("vcc")
        elif op.startswith("ds_"):
            self.cls = "ds"; self.lgkm = True
            if op.startswith(("ds_read", "ds_bpermute", "ds_permute", "ds_swizzle")):
                self.wr = R(0); self.rd = allfrom(1)
            else:
                self.rd = allfrom(0)
        elif op.startswith(("buffer_load", "global_load")):
            self.cls = "vmem"; self.vm = True
            if t.endswith(" lds") or " lds " in t or "load_lds" in op:
                self.dma = True; self.rd = allfrom(0) + regs_of("m0")
            else:
                self.wr = R(0); self.rd = allfrom(1)
        elif op.startswith(("buffer_store", "global_store")):
            self.cls = "vmem"; self.vm = True; self.rd = allfrom(0)
            self.storedata = R(0) if op.startswith("buffer") else R(1)
            self.wide_store = op.endswith(("x3", "x4"))
        elif op.startswith(("buffer_atomic", "global_atomic")):
            self.cls = "vmem"; self.vm = True
            if " sc0" in t:
                self.wr = R(0); self.rd = allfrom(0 if op.startswith("buffer") else 1)
            else:
                self.rd = allfrom(0)
        elif op.startswith(("buffer_wbl2", "buffer_inv")):
            self.cls = "vmem"; self.vm = True
        elif op.startswith(("s_load", "s_buffer_load", "s_memtime", "s_memrealtime")):
            self.cls = "smem"; self.smem = True; self.lgkm = True; self.wr = R(0); self.rd = allfrom(1)
        elif op.startswith("s_"):
            self.cls = "salu"
            if op == "s_nop":
                self.nops = int(ops[0], 0) + 1
            elif op.startswith(("s_cbranch", "s_branch")):
                self.branch = ops[0]
                if "vcc" in op: self.rd = regs_of("vcc")
                if "exec" in op: self.rd = regs_of("exec")
            elif op.startswith(("s_cmp", "s_bitcmp", "s_waitcnt", "s_barrier", "s_endpgm", "s_setprio", "s_sleep", "s_setpc")):
                self.rd = allfrom(0)
            elif "saveexec" in op:
                self.wr = R(0) + regs_of("exec"); self.rd = allfrom(1) + regs_of("exec")
            else:
                self.wr = R(0); self.rd = allfrom(1)
                if op.startswith(("s_addk", "s_mulk")): self.rd += R(0)
        else:
            raise ValueError("unknown op " + text)

class Kernel:
    def __init__(self, name):
        self.name = name
        self.ins = []
        self.vmq = []
        self.lgq = []
        self.nid = 0
        self.auto = True
        self.snap = {}
        self.dummy = set()
        self.ool = []
        self.nlab = 0
    def _wait_vm_idx(self, idx):
        n = len(self.vmq) - 1 - idx
        self._raw(f"s_waitcnt vmcnt({min(n,63)})")
        if n > 63: n = 63
        self.vmq = self.vmq[len(self.vmq) - n:] if n else []
    def _wait_lg_idx(self, idx):
        if any(e[2] for e in self.lgq):
            n = 0
        else:
            n = min(len(self.lgq) - 1 - idx, 15)
        self._raw(f"s_waitcnt lgkmcnt({n})")
        self.lgq = self.lgq[len(self.lgq) - n:] if n else []
    def _raw(self, text):
        i = Ins(text); self.ins.append(i); return i
    def wait_vm(self, tok):
        for k in range(len(self.vmq) - 1, -1, -1):
            if self.vmq[k][0] <= tok:
                self._wait_vm_idx(k); return
    def wait_lg(self, tok):
        for k in range(len(self.lgq) - 1, -1, -1):
            if self.lgq[k][0] <= tok:
                self._wait_lg_idx(k); return
    def wait_all_vm(self):
        if self.vmq: self._wait_vm_idx(len(self.vmq) - 1)
    def wait_all_lg(self):
        if self.lgq: self._wait_lg_idx(len(self.lgq) - 1)
    def __call__(self, text):
        tok = None
        for line in text.split("\n"):
            line = line.strip()
            if not line or line.startswith(";"): continue
            tok = self.emit(line)
        return tok
    def emit(self, line):
        i = Ins(line)
        if i.op == "s_waitcnt":
            m = re.search(r"vmcnt\((\d+)\)", line)
            if m:
                n = int(m.group(1)); self.vmq = self.vmq[max(0, len(self.vmq) - n):] if n else []
            m = re.search(r"lgkmcnt\((\d+)\)", line)
            if m:
                n = int(m.group(1))
                self.lgq = self.lgq[max(0, len(self.lgq) - n):] if n else []
            self.ins.append(i); return None
        if self.auto:
            touched = (set(i.rd) | set(i.wr)) - self.dummy
            for k in range(len(self.vmq) - 1, -1, -1):
                if self.vmq[k][1] & touched:
                    self._wait_vm_idx(k); break
            for k in range(len(self.lgq) - 1, -1, -1):
                if self.lgq[k][1] & touched:
                    self._wait_lg_idx(k); break
        if i.branch is not None:
            self.snap.setdefault(i.branch, []).append((list(self.vmq), list(self.lgq)))
        if i.cls == "label":
            pass
        self.ins.append(i)
        self.nid += 1
        if i.vm:
            self.vmq.append((self.nid, set(i.wr)))
            assert len(self.vmq) <= 63, "vmcnt overflow at " + line
        if i.lgkm:
            self.lgq.append((self.nid, set(i.wr), i.smem))
        return self.nid
    def restore_at(self, label):
        self.emit(label + ":")
        st = self.snap[label]
        assert len(st) >= 1
        self.vmq, self.lgq = list(st[0][0]), list(st[0][1])
    def newlabel(self, p="L"):
        self.nlab += 1
        return f"{self.name}_{p}{self.nlab}"
    def join(self, label=None):
        if label: self.emit(label + ":")
        self.nid += 1
        self.vmq = [(self.nid, set())]
        self.lgq = []
        return self.nid
    def assert_no_pending_regs(self):
        for e in self.vmq: assert not (e[1] - self.dummy), "pending vmem regs at path end %s" % sorted(e[1])
        assert not self.lgq or all(not e[1] for e in self.lgq), "pending lgkm regs at path end"
    def flush_ool(self):
        au = self.auto; self.auto = False
        for t in self.ool:
            for line in t.split("\n"):
                line = line.strip()
                if line: self.ins.append(Ins(line))
        self.ool = []; self.auto = au
    def finish(self):
        out = []
        hist = []
        pos = 0
        snaps = {}
        def need(i, hist, pos):
            req = 0
            rd, wr = set(i.rd), set(i.wr)
            for (p, ppos) in hist:
                dist = pos - ppos - 1
                w = 0
                pw = set(p.wr)
                if p.cls == "valu":
                    vw = {r for r in pw if r[0] in "va"}
                    sw = {r for r in pw if r[0] == "s"}
                    if i.cls == "mfma" and vw & rd: w = max(w, 2)
                    if p.trans and (vw & rd) and not (i.cls == "valu" and i.trans): w = max(w, 1)
                    if i.cls == "valu":
                        if (i.perm or i.dpp) and vw & rd: w = max(w, 2)
                        if i.rdlane and vw & rd: w = max(w, 1)
                        if sw & rd: w = max(w, 4 if i.rdlane else 2)
                        if i.dpp and (("s", 126) in sw): w = max(w, 5)
                    if i.cls == "vmem" and sw & rd: w = max(w, 5)
                    if i.cls in ("salu", "smem") and sw & rd: w = max(w, 1)
                    if i.cls == "mfma" and ("s", 126) in sw: w = max(w, 4)
                elif p.cls == "mfma":
                    big = p.passes == 8
                    if i.cls == "mfma":
                        if pw & set(i.srcAB): w = max(w, 12 if big else 8)
                        if pw & set(i.srcC):
                            if not (set(i.srcC) == pw and i.passes == p.passes): w = max(w, 10 if big else 6)
                        elif pw & wr: w = max(w, 10 if big else 6)
                    elif i.cls in ("valu", "vmem", "ds"):
                        if pw & (rd | wr): w = max(w, 12 if big else 8)
                        if i.cls == "valu" and set(p.srcC) & wr: w = max(w, 7 if big else 3)
                elif p.cls == "salu":
                    if ("s", 124) in pw and i.dma: w = max(w, 1)
                elif p.cls == "vmem":
                    if p.wide_store and set(p.storedata) & wr: w = max(w, 2 if i.cls == "valu" else 1)
                elif p.cls == "ds":
                    pass
                req = max(req, w - dist)
            return req
        labels_seen = {}
        prev_uncond = False
        for i in self.ins:
            if i.cls == "label":
                if prev_uncond: hist = []
                for (h, bpos) in snaps.get(i.label, []):
                    hist = hist + [(p, pos - (bpos - pp)) for (p, pp) in h]
                labels_seen[i.label] = len(out)
                out.append(i); prev_uncond = False
                continue
            r = need(i, hist, pos)
            while r > 0:
                n = min(r, 16)
                out.append(Ins(f"s_nop {n-1}")); pos += n; r -= n
            out.append(i)
            hist.append((i, pos))
            pos += i.nops if i.nops else 1
            hist = [(p, pp) for (p, pp) in hist if pos - pp <= 24]
            if i.branch is not None:
                if i.branch in labels_seen:
                    h2 = list(hist); p2 = pos
                    for j in out[labels_seen[i.branch] + 1: labels_seen[i.branch] + 30]:
                        if j.cls == "label": continue
                        assert need(j, h2, p2) <= 0, f"hazard across back edge at {j.text}"
                        p2 += j.nops if j.nops else 1
                else:
                    snaps.setdefault(i.branch, []).append((list(hist), pos))
            prev_uncond = i.op in ("s_branch", "s_endpgm", "s_setpc_b64")
        self.out = out
        return out
    def maxregs(self):
        mv = ma = ms = -1
        for i in self.ins:
            for (k, n) in i.rd + i.wr:
                if k == "v": mv = max(mv, n)
                elif k == "a": ma = max(ma, n)
                elif n < 102: ms = max(ms, n)
        return mv + 1, ma + 1, ms + 1
    def text(self):
        out = self.finish()
        L = [f".p2align 8", f".globl {self.name}", f".type {self.name},@function", f"{self.name}:"]
        for i in out:
            L.append(i.text if i.cls == "label" else "  " + i.text)
        return "\n".join(L) + "\n"
    def descriptor(self, force_vgpr=None):
        nv, na, ns = self.maxregs()
        acc = max(4, (nv + 3) // 4 * 4)
        tot = acc + na if na else nv
        if force_vgpr: tot = max(tot, force_vgpr)
        return f""".p2align 6
.amdhsa_kernel {self.name}
  .amdhsa_next_free_vgpr {tot}
  .amdhsa_next_free_sgpr {max(ns, 16)}
  .amdhsa_accum_offset {acc}
  .amdhsa_group_segment_fixed_size 0
  .amdhsa_kernarg_size 96
  .amdhsa_user_sgpr_count 2
  .amdhsa_user_sgpr_kernarg_segment_ptr 1
  .amdhsa_system_sgpr_workgroup_id_x 1
.end_amdhsa_kernel
"""

def v(n, c=1): return f"v{n}" if c == 1 else f"v[{n}:{n+c-1}]"
def a(n, c=1): return f"a{n}" if c == 1 else f"a[{n}:{n+c-1}]"
def s(n, c=1): return f"s{n}" if c == 1 else f"s[{n}:{n+c-1}]"
import struct
def f2u(x): return "0x%08x" % struct.unpack("<I", struct.pack("<f", x))[0]

class Alloc:
    def __init__(self, start=0): self.n = start
    def __call__(self, c=1, align=None):
        al = align or (2 if c == 2 else (4 if c >= 4 else 1))
        self.n = (self.n + al - 1) // al * al
        r = self.n; self.n += c; return r
```

```python
import sys, math
from asmlib import *

NAME = "adaLN_cond__sliding_local_dilated__glu_gated_geglu__prompt"
KN = NAME + "_kernel"
STAMP = "--stamp" in sys.argv
FORCE_MIXED = "--mixed" in sys.argv
WS_FLAG, WS_MODA, WS_MODB, WS_STAT, WS_H, WS_O, WS_H2, WS_HH, WS_END = 0, 0x8000, 0x10000, 0x14000, 0x40000, 0x240000, 0x400000, 0x5C0000, 0xCC0000
WS_DBG = 0xD00000
if STAMP: WS_END = 0x1000000
SZ_X, SZ_WQKV, SZ_WO, SZ_WG, SZ_WD, SZ_C, SZ_WMOD = 1835008, 1204224, 401408, 1605632, 1605632, 896, 2408448
FA, FB, FC, FD, FE, FF = 0, 32 * 4, 320 * 4, 448 * 4, 512 * 4, 768 * 4
LOG2E = 1.4426950408889634
NEG = f2u(-1e30)
X, WQ, WO, WG, WU, WD, C, WM, OUT, DBG, WS, CODE = [f"s[{4*i}:{4*i+3}]" for i in range(1, 13)]
sW, sT, sI, sMODE, sFL = "s52", "s53", "s54", "s55", "s56"
L_WQ = 0; L_GV = 86016; L_GV2 = 117760; L_WO = 106496; L_MODE = 116736
WS_MB = 0x38000
WS_MB2 = 0x34000
L_ST = 72192; L_Q = L_ST; L_K = L_Q + 128 * 80; L_V = L_K + 144 * 80; L_MODL = 105472
L_G = 0; L_U = 57344; L_RED = 114688; L_END = 163840
assert L_V + 144 * 80 == L_MODL
SPIN = 1 << 18

k = Kernel(KN)
DUM = 255
k.dummy = {("v", DUM)}

def stamp(i):
    if not STAMP: return
    k.wait_all_lg()
    k(f"{'s_memrealtime' if i >= 22 else 's_memtime'} s[100:101]\ns_waitcnt lgkmcnt(0)\ns_mov_b32 s{64+i if i < 22 else i-22}, s100")
def stamp_out():
    if not STAMP: return
    k.wait_all_vm()
    stamp(21); stamp(23)
    k("s_mov_b64 exec, 1")
    k(f"s_lshl_b32 s96, s2, 3\ns_add_u32 s96, s96, {sW}\ns_lshl_b32 s96, s96, 7\ns_add_u32 s96, s96, {WS_DBG}")
    k("v_mov_b32 v0, 0")
    for q in range(6):
        for j in range(4): k(f"v_mov_b32 v{4+j}, s{64+4*q+j if 4*q+j < 22 else 4*q+j-22}")
        k(f"buffer_store_dwordx4 v[4:7], v0, {WS}, s96 offen offset:{16*q}\ns_nop 1")

def srd(d, b, size):
    k(f"s_mov_b32 s{d}, s{b}\ns_and_b32 s{d+1}, s{b+1}, 0xffff\ns_mov_b32 s{d+2}, {size}\ns_mov_b32 s{d+3}, 0x20000")
def rnd(r):
    k(f"v_cvt_pk_bf16_f32 v{r}, v{r}, v{r}\nv_and_b32 v{r}, 0xffff0000, v{r}")
def rnd2(a, b, t):
    k(f"v_cvt_pk_bf16_f32 v{t}, v{a}, v{b}\nv_lshlrev_b32 v{a}, 16, v{t}\nv_and_b32 v{b}, 0xffff0000, v{t}")
def unpack(dst, src):
    k(f"v_lshlrev_b32 v{dst}, 16, v{src}\nv_and_b32 v{dst+1}, 0xffff0000, v{src}")
def ln_scalars(mean, var, rinv):
    rnd(mean); rnd(var)
    k(f"v_add_f32 v{var}, {f2u(1e-5)}, v{var}"); rnd(var)
    k(f"v_sqrt_f32 v{var}, v{var}"); rnd(var)
    k(f"v_rcp_f32 v{rinv}, v{var}")
def swapred(r, t, op, steps):
    for st in steps:
        k(f"v_mov_b32 v{t}, v{r}\nv_permlane{st}_swap_b32 v{r}, v{t}\n{op} v{r}, v{r}, v{t}")

def dual(instrs, modereg=sMODE):
    lm, le = k.newlabel("m"), k.newlabel("e")
    for t in instrs:
        i = Ins(t); touched = set(i.rd)
        for q in range(len(k.vmq) - 1, -1, -1):
            if k.vmq[q][1] & touched: k._wait_vm_idx(q); break
        for q in range(len(k.lgq) - 1, -1, -1):
            if k.lgq[q][1] & touched: k._wait_lg_idx(q); break
    k(f"s_cmp_lg_u32 {modereg}, 0\ns_cbranch_scc1 {lm}")
    for t in instrs: k(t)
    k(f"{le}:")
    k.ool.append(f"{lm}:\n" + "\n".join(t + " sc1" for t in instrs) + f"\ns_nop 1\ns_branch {le}")

vLANE, vL16, vONE, vPA, vPD = 1, 2, 4, 3, 7
def set_flag(soff, width=1):
    k.wait_all_vm()
    k("s_mov_b64 exec, 1")
    dual([f"buffer_store_dword v{vONE}, off, {WS}, {soff}" if width == 1 else f"buffer_store_dwordx{width} v[{vONE}:{vONE+width-1}], off, {WS}, {soff}"])
    k("s_mov_b64 exec, -1")
def poll(soff, count):
    lp, ld = k.newlabel("p"), k.newlabel("d")
    k(f"v_min_u32 v{vPA}, {count-1}, v{vLANE}\nv_lshlrev_b32 v{vPA}, 2, v{vPA}\ns_mov_b32 s99, {SPIN}")
    k(f"{lp}:")
    k(f"buffer_load_dword v{vPD}, v{vPA}, {WS}, {soff} offen sc1")
    k("s_waitcnt vmcnt(0)")
    k(f"v_cmp_ne_u32 vcc, 1, v{vPD}\ns_sub_u32 s99, s99, 1\ns_cbranch_vccz {ld}\ns_cmp_lg_u32 s99, 0\ns_cbranch_scc1 {lp}")
    k(f"{ld}:")
def get_mode():
    lp, ld = k.newlabel("p"), k.newlabel("d")
    k(f"v_mov_b32 v{vPA}, {L_MODE}\ns_mov_b32 s99, {SPIN*4}")
    k.wait_all_lg()
    k(f"{lp}:")
    k(f"ds_read_b32 v{vPD}, v{vPA}\ns_waitcnt lgkmcnt(0)")
    k(f"v_cmp_eq_u32 vcc, 0, v{vPD}\ns_sub_u32 s99, s99, 1\ns_cbranch_vccz {ld}\ns_cmp_lg_u32 s99, 0\ns_cbranch_scc1 {lp}")
    k(f"{ld}:")
    k(f"v_readfirstlane_b32 {sMODE}, v{vPD}\ns_sub_u32 {sMODE}, {sMODE}, 1")
def barrier():
    k.wait_all_lg(); k("s_barrier")

A = Alloc(8)
vHF = A(); vRR = A(); vCC = A(); vNG = A(); t0 = A(); t1 = A(); t2 = A(); t3 = A()
XR = A(4); MV = A(32)
BASE = A.n

PF0_ROWS = 128
PART1 = [('G', 0), ('U', 0), ('G', 1)]
PART2 = [('U', 1), ('G', 2), ('U', 2)]
PART3 = []
WD_START = 12

sTAG = "s3"
k(f"s_cmp_ge_u32 s2, 256\ns_cbranch_scc1 L_end")
for d, off in ((40, 80), (4, 0), (32, 64), (28, 56), (44, 88), (8, 8), (12, 16), (16, 32), (20, 40), (24, 48), (36, 72)):
    k(f"s_load_dwordx2 s[{d}:{d+1}], s[0:1], {off}")
k(f"s_getpc_b64 s[48:49]")
k(f"v_and_b32 v{vLANE}, 63, v0\nv_lshrrev_b32 v{t0}, 6, v0\nv_readfirstlane_b32 {sW}, v{t0}")
k(f"v_mov_b32 v{t0}, {L_MODE}\nv_mov_b32 v{t1}, 0\nds_write_b32 v{t0}, v{t1}")
k(f"s_and_b32 {sT}, s2, 7\ns_lshr_b32 {sI}, s2, 3\ns_lshl_b32 {sFL}, {sT}, 12")
k(f"s_getreg_b32 {sTAG}, hwreg(HW_REG_XCC_ID)\ns_and_b32 {sTAG}, {sTAG}, 15\ns_add_u32 {sTAG}, {sTAG}, 1")
k(f"v_lshlrev_b32 v{vL16}, 4, v{vLANE}\nv_mov_b32 v{vONE}, 1\nv_mov_b32 v{vONE+1}, 1\nv_mov_b32 v{vONE+2}, 1")
k(f"v_lshrrev_b32 v{vHF}, 5, v{vLANE}\nv_bfe_u32 v{vRR}, v{vLANE}, 2, 2\nv_and_b32 v{vCC}, 3, v{vLANE}\nv_bfe_u32 v{vNG}, v{vLANE}, 4, 1")
k("s_and_b32 s48, s48, 0xffffff00\ns_mov_b32 s50, L_code_end-" + KN + "\ns_mov_b32 s51, 0x20000")
for d, sz in ((4, SZ_X), (32, SZ_WMOD), (28, SZ_C), (44, WS_END), (8, SZ_WQKV), (40, 256), (12, SZ_WO), (16, SZ_WG), (20, SZ_WG), (24, SZ_WD), (36, SZ_X)):
    k(f"s_mov_b32 s{d+2}, {sz}\ns_mov_b32 s{d+3}, 0x20000")
k(f"s_and_b32 s57, {sI}, 15\ns_lshr_b32 s58, {sI}, 4\ns_lshl_b32 s58, s58, 2\ns_add_u32 s58, s58, 1")
k(f"s_mul_i32 s59, {sI}, 37\ns_lshr_b32 s59, s59, 8\ns_mul_i32 s60, s59, 7\ns_sub_u32 s60, {sI}, s60")
k(f"s_mul_i32 s61, {sT}, {9*28672}\ns_add_u32 s61, s61, {WS_H}")
k(f"s_and_b32 s88, {sW}, 1\ns_lshl_b32 s89, s59, 1\ns_add_u32 s62, s88, s89\ns_lshr_b32 s88, {sW}, 1\ns_lshl_b32 s89, s60, 2\ns_add_u32 s63, s88, s89")
k(f"s_lshl_b32 s87, {sT}, 5\ns_add_u32 s86, s87, {sI}")
if STAMP:
    for i in range(20): k(f"s_mov_b32 s{64+i}, 0")
k("s_waitcnt lgkmcnt(0)\ns_barrier")
stamp(22); stamp(0)
k(f"s_cmp_ge_u32 {sW}, 4\ns_cbranch_scc1 L_helper")

NRW = 3
RX = BASE; RF = BASE + 12; RT = BASE + 36; RS = BASE + 52
def rows_load(srho):
    k(f"s_lshl_b32 s88, {sT}, 8\ns_add_u32 s88, s88, {srho}\ns_mov_b32 exec_hi, 0x00ffffff")
    for r in range(NRW):
        k(f"s_add_i32 s89, s88, {r-32}\ns_max_i32 s89, s89, 0\ns_mul_i32 s89, s89, 896")
        k(f"buffer_load_dwordx4 {v(RX+4*r,4)}, v{vL16}, {X}, s89 offen")
    k("s_mov_b32 exec_hi, -1")
def red64(regs, t):
    for mod in ("quad_perm:[1,0,3,2]", "quad_perm:[2,3,0,1]", "row_half_mirror", "row_mirror"):
        for r in regs: k(f"v_add_f32_dpp v{r}, v{r}, v{r} {mod} row_mask:0xf bank_mask:0xf")
    for st in (16, 32):
        for j, r in enumerate(regs): k(f"v_mov_b32 v{t+j}, v{r}")
        for j, r in enumerate(regs): k(f"v_permlane{st}_swap_b32 v{r}, v{t+j}")
        for j, r in enumerate(regs): k(f"v_add_f32 v{r}, v{r}, v{t+j}")
def rows_norm():
    R = range(NRW)
    S = [RS + r for r in R]; Q = [RS + 3 + r for r in R]; RI = [RS + 6 + r for r in R]; T = RS + 9
    for r in R: k(f"v_mov_b32 v{S[r]}, 0\nv_mov_b32 v{Q[r]}, 0")
    k("s_mov_b32 exec_hi, 0x00ffffff")
    for r in R:
        for j in range(4): unpack(RF + 8 * r + 2 * j, RX + 4 * r + j)
    for j in range(8):
        for r in R: k(f"v_add_f32 v{S[r]}, v{S[r]}, v{RF+8*r+j}")
    k("s_mov_b32 exec_hi, -1")
    red64(S, T)
    for r in R: k(f"v_mul_f32 v{S[r]}, {f2u(1/448)}, v{S[r]}")
    k("s_mov_b32 exec_hi, 0x00ffffff")
    for j in range(8):
        for r in R: k(f"v_sub_f32 v{T+r}, v{RF+8*r+j}, v{S[r]}")
        for r in R: k(f"v_fmac_f32 v{Q[r]}, v{T+r}, v{T+r}")
    k("s_mov_b32 exec_hi, -1")
    red64(Q, T)
    for r in R:
        k(f"v_mul_f32 v{Q[r]}, {f2u(1/448)}, v{Q[r]}")
        ln_scalars(S[r], Q[r], RI[r])
    for r in R:
        for j in range(4):
            a0 = RF + 8 * r + 2 * j
            k(f"v_sub_f32 v{a0}, v{a0}, v{S[r]}\nv_sub_f32 v{a0+1}, v{a0+1}, v{S[r]}"); rnd2(a0, a0 + 1, T)
            k(f"v_mul_f32 v{a0}, v{a0}, v{RI[r]}\nv_mul_f32 v{a0+1}, v{a0+1}, v{RI[r]}"); rnd2(a0, a0 + 1, T)
def rows_publish(srho):
    T = RS + 9
    for r in range(NRW):
        k(f"s_add_u32 s88, {srho}, {r}\ns_lshr_b32 s89, s88, 5\ns_mul_i32 s89, s89, 28672\ns_and_b32 s88, s88, 31\ns_lshl_b32 s88, s88, 4\ns_add_u32 s89, s89, s88\ns_add_u32 s{94+r}, s89, s61")
    k(f"s_lshl_b32 s90, {srho}, 2\ns_add_u32 s90, s90, {sFL}\ns_add_u32 s90, s90, {FB}")
    k(f"v_lshlrev_b32 v{T+1}, 9, v{vLANE}\ns_add_u32 s88, {sFL}, {WS_MODA}")
    poll(sFL, 28)
    stamp(2)
    k("s_mov_b32 exec_hi, 0x00ffffff")
    for vec in (1, 0):
        for q in range(2):
            k(f"buffer_load_dwordx4 {v(RT+8*vec+4*q,4)}, v{vL16}, {WS}, s88 offen offset:{1792*vec+896*q} sc1")
    for r in range(NRW):
        for j in range(4):
            a0 = RF + 8 * r + 2 * j
            k(f"v_pk_mul_f32 {v(a0,2)}, {v(a0,2)}, {v(RT+8+2*j,2)}"); rnd2(a0, a0 + 1, T)
    for r in range(NRW):
        for j in range(4):
            a0 = RF + 8 * r + 2 * j
            k(f"v_pk_add_f32 {v(a0,2)}, {v(a0,2)}, {v(RT+2*j,2)}\nv_cvt_pk_bf16_f32 v{RX+4*r+j}, v{a0}, v{a0+1}")
    dual([f"buffer_store_dwordx4 {v(RX+4*r,4)}, v{T+1}, {WS}, s{94+r} offen" for r in range(NRW)])
    set_flag("s90", NRW)
def xres_load():
    k(f"s_lshl_b32 s88, {sT}, 3\ns_add_u32 s88, s88, s62\ns_mul_i32 s88, s88, 28672\ns_lshl_b32 s89, s63, 5\ns_add_u32 s88, s88, s89")
    k(f"v_and_b32 v{t0}, 31, v{vLANE}\nv_mul_u32_u24 v{t0}, 896, v{t0}\nv_lshl_add_u32 v{t0}, v{vHF}, 3, v{t0}")
    for h in range(2):
        k(f"buffer_load_dwordx2 {v(XR+2*h,2)}, v{t0}, {X}, s88 offen offset:{16*h}")
def reg_byte(flag=""):
    k(f"v_mov_b32 v{t3}, {sTAG}\ns_mov_b64 exec, 1\nbuffer_store_byte v{t3}, off, {DBG}, s86 {flag}\ns_mov_b64 exec, -1")
def check_team():
    lp, ok, slow, sl, sd, wr = [k.newlabel(c) for c in ("cp", "ok", "sl", "sp", "sd", "wr")]
    k(f"v_and_b32 v{vPA}, 31, v{vLANE}\ns_mov_b32 s99, 64")
    k(f"{lp}:")
    k(f"buffer_load_ubyte v{vPD}, v{vPA}, {DBG}, s87 offen sc1\ns_waitcnt vmcnt(0)")
    k(f"v_and_b32 v{vPD}, 0x7f, v{vPD}\nv_cmp_ne_u32 vcc, {sTAG}, v{vPD}\ns_mov_b32 s98, {2 if FORCE_MIXED else 1}\ns_cbranch_vccnz {slow}")
    k(f"{wr}:")
    k(f"v_mov_b32 v{vPA}, {L_MODE}\nv_mov_b32 v{vPD}, s98\nds_write_b32 v{vPA}, v{vPD}")
    k.ool.append(f"""{slow}:
        s_sub_u32 s99, s99, 1
        s_cmp_lg_u32 s99, 0
        s_cbranch_scc1 {lp}
        v_mov_b32 v{vPD}, {sTAG}
        s_mov_b64 exec, 1
        buffer_store_byte v{vPD}, off, {DBG}, s86 sc1
        s_mov_b64 exec, -1
        s_mov_b32 s99, {SPIN}
        {sl}:
        s_sleep 16
        buffer_load_ubyte v{vPD}, v{vPA}, {DBG}, s87 offen sc1
        s_waitcnt vmcnt(0)
        v_and_b32 v{vPD}, 0x7f, v{vPD}
        v_cmp_eq_u32 vcc, 0, v{vPD}
        s_sub_u32 s99, s99, 1
        s_cbranch_vccz {sd}
        s_cmp_lg_u32 s99, 0
        s_cbranch_scc1 {sl}
        {sd}:
        s_mov_b32 s98, 2
        s_branch {wr}""")

B = Alloc(BASE + 64)
vW0 = B(); vW1 = B(); BIAS = B(8); BIASF = B(4); ACC = BASE; WF = [BASE + 48, B(12)]
NRX = 24; XF = B(4 * NRX)
assert B.n <= 255, B.n
def p1_setup():
    k(f"s_and_b32 s93, s57, 1\ns_lshl_b32 s93, s93, 3")
    k(f"v_lshl_add_u32 v{t1}, v{vHF}, 3, v{vRR}\nv_mul_u32_u24 v{vW0}, 192, v{t1}\nv_lshl_add_u32 v{vW0}, v{vNG}, 5, v{vW0}\nv_lshl_add_u32 v{vW0}, v{vCC}, 3, v{vW0}\nv_add_u32 v{vW0}, s93, v{vW0}\nv_add_u32 v{vW1}, 43008, v{vW0}")
    k(f"v_lshrrev_b32 v{t0}, 4, v{vLANE}\nv_lshlrev_b32 v{t0}, 2, v{t0}\nv_and_b32 v{t1}, 15, v{vLANE}\nv_sub_u32 v{t0}, v{t1}, v{t0}\nv_mov_b32 v{t2}, {NEG}")
    for tp in range(2):
        for r in range(4):
            k(f"v_add_u32 v{t1}, {16-16*tp-r}, v{t0}\nv_and_b32 v{t1}, 0xfffffff1, v{t1}\nv_cmp_eq_u32 vcc, 0, v{t1}\nv_cndmask_b32_e64 v{BIAS+4*tp+r}, v{t2}, 0, vcc")
    k(f"s_add_u32 s88, s58, {sW}\ns_lshl_b32 s89, {sT}, 4\ns_add_u32 s89, s89, s88\ns_cmp_eq_u32 s89, 1\ns_cselect_b64 vcc, -1, 0")
    for r in range(4): k(f"v_cndmask_b32 v{BIASF+r}, v{BIAS+r}, v{t2}, vcc")
k(f"s_cmp_lg_u32 {sW}, 0\ns_cbranch_scc1 L_r1")
k(f"s_cmp_eq_u32 {sI}, 15\ns_cbranch_scc1 L_lead")
reg_byte()
k.join("L_r1")
k.ool.append(f"""L_lead:
    v_mov_b32 v{t0}, 0
    v_mov_b32 v{t2}, 0
    v_mov_b32 v{t3}, 0
    buffer_store_dwordx4 v[{t0}:{t3}], v{vL16}, {WS}, {sFL} offen sc1
    buffer_store_dwordx4 v[{t0}:{t3}], v{vL16}, {WS}, {sFL} offen offset:1024 sc1
    buffer_store_dwordx4 v[{t0}:{t3}], v{vL16}, {WS}, {sFL} offen offset:2048 sc1
    buffer_store_dwordx4 v[{t0}:{t3}], v{vL16}, {WS}, {sFL} offen offset:3072 sc1
    s_nop 1
    s_branch L_r1""")
k(f"s_cmp_ge_u32 {sI}, 16\ns_cbranch_scc1 L_fmain")
k(f"s_mul_i32 s91, {sI}, 18\ns_mul_i32 s92, {sW}, 3\ns_add_u32 s91, s91, s92")
rows_load("s91")
p1_setup()
k.wait_all_vm()
k(f"s_lshl_b32 s88, {sW}, 5\ns_add_u32 s88, s88, {sI}\ns_cmp_lg_u32 s88, 15\ns_cbranch_scc1 L_r2")
reg_byte()
k.join("L_r2")
rows_norm()
stamp(1)
k(f"s_cmp_lg_u32 {sW}, 0\ns_cbranch_scc1 L_r3")
check_team()
k.join("L_r3")
get_mode()
rows_publish("s91")
stamp(3)
k.join("L_p1")
k(f"s_add_u32 s88, s58, {sW}\ns_lshl_b32 s89, s88, 7\ns_add_u32 s89, s89, {sFL}\ns_add_u32 s89, s89, {FB}")
k(f"s_mul_i32 s93, s88, 28672\ns_add_u32 s93, s93, s61")
poll("s89", 32)
stamp(4)
def p1_rdw(ks, j):
    base, o = (vW0, ks * 3072) if ks < 14 else (vW1, (ks - 14) * 3072)
    for q in range(2):
        k(f"ds_read_b64_tr_b16 {v(WF[ks&1]+4*j+2*q,2)}, v{base} offset:{o+768*q+64*j}")
def p1_ld(ks):
    if ks % 4 == 0 and ks: k(f"s_add_u32 s93, s93, 4096")
    k(f"buffer_load_dwordx4 {v(XF+4*(ks%NRX),4)}, v{vL16}, {WS}, s93 offen offset:{1024*(ks%4)} sc1")
PD1 = 6
for ks in range(PD1): p1_ld(ks)
k("s_barrier")
stamp(5)
for j in range(3): p1_rdw(0, j)
for ks in range(28):
    if ks % 4 == 3 and ks < 27: k("s_barrier")
    for j in range(3):
        c = "0" if ks == 0 else v(ACC + 16 * j, 16)
        k(f"v_mfma_f32_32x32x16_bf16 {v(ACC+16*j,16)}, {v(WF[ks&1]+4*j,4)}, {v(XF+4*(ks%NRX),4)}, {c}")
        if ks + 1 < 28: p1_rdw(ks + 1, j)
        if j == 0 and ks + PD1 < 28: p1_ld(ks + PD1)
        if j == 1 and ks == 23: xres_load()
stamp(6)
PK = XF
k(f"v_and_b32 v{t0}, 31, v{vLANE}\ns_lshl_b32 s92, {sW}, 5\nv_add_u32 v{t0}, s92, v{t0}\nv_mul_u32_u24 v{t0}, 80, v{t0}\nv_lshl_add_u32 v{t0}, v{vHF}, 3, v{t0}\nv_add_u32 v{t0}, {L_Q}, v{t0}")
for jj in range(3):
    for i in range(8): k(f"v_cvt_pk_bf16_f32 v{PK+8*jj+i}, v{ACC+16*jj+2*i}, v{ACC+16*jj+2*i+1}")
k(f"s_mov_b32 exec_lo, 0\nv_mov_b32 v{PK+6}, 0\nv_mov_b32 v{PK+7}, 0\ns_mov_b32 exec_lo, -1")
barrier()
for jj, off in enumerate((0, L_K - L_Q + 16 * 80, L_V - L_Q + 16 * 80)):
    for i in range(4): k(f"ds_write_b64 v{t0}, {v(PK+8*jj+2*i,2)} offset:{off+16*i}")
def modl_read():
    k(f"s_lshr_b32 s88, {sW}, 1\ns_lshl_b32 s88, s88, 5\ns_add_u32 s88, s88, {L_MODL}\nv_lshlrev_b32 v{t3}, 7, v{vHF}\nv_add_u32 v{t3}, s88, v{t3}")
    for vec in range(4):
        for h in range(2): k(f"ds_read_b128 {v(MV+8*vec+4*h,4)}, v{t3} offset:{256*vec+16*h}")
modl_read()
QF = XF + 24; KF = XF + 32; VF = XF + 44; S = XF + 56; P = XF + 72; O = XF + 80; MX = ACC
k(f"v_and_b32 v{t2}, 15, v{vLANE}\nv_lshrrev_b32 v{t3}, 4, v{vLANE}")
k(f"v_add_u32 v{t0}, s92, v{t2}\nv_mul_u32_u24 v{t0}, 80, v{t0}\nv_lshl_add_u32 v{t0}, v{t3}, 4, v{t0}\nv_add_u32 v{t0}, {L_Q}, v{t0}")
k(f"v_lshl_add_u32 v{t1}, v{t3}, 2, v{vRR}\nv_add_u32 v{t1}, s92, v{t1}\nv_mul_u32_u24 v{t1}, 80, v{t1}\nv_lshl_add_u32 v{t1}, v{vCC}, 3, v{t1}\nv_add_u32 v{t1}, {L_V}, v{t1}")
barrier()
stamp(7)
for qt in range(2): k(f"ds_read_b128 {v(QF+4*qt,4)}, v{t0} offset:{16*80*qt}")
for t in range(3): k(f"ds_read_b128 {v(KF+4*t,4)}, v{t0} offset:{L_K-L_Q+16*80*t}")
for dt in range(2):
    for t in range(3): k(f"ds_read_b64_tr_b16 {v(VF+6*dt+2*t,2)}, v{t1} offset:{16*80*t+32*dt}")
for qt in range(2):
    for tp in range(2):
        b = BIASF if (qt == 0 and tp == 0) else BIAS + 4 * tp
        k(f"v_mfma_f32_16x16x32_bf16 {v(S+8*qt+4*tp,4)}, {v(KF+4*(qt+tp),4)}, {v(QF+4*qt,4)}, {v(b,4)}")
k(f"s_mul_i32 s88, s57, 7\nv_add_u32 v{t3}, s88, v{t3}\nv_lshrrev_b32 v{t0}, 1, v{t3}\nv_lshlrev_b32 v{t0}, 9, v{t0}\nv_and_b32 v{t3}, 1, v{t3}\nv_lshl_add_u32 v{t0}, v{t3}, 3, v{t0}\nv_lshl_add_u32 v{t0}, v{t2}, 4, v{t0}")
k(f"s_add_u32 s88, s58, {sW}\ns_sub_u32 s88, s88, 1\ns_lshl_b32 s89, {sT}, 3\ns_add_u32 s89, s89, s88\ns_mul_i32 s89, s89, 28672\ns_add_u32 s89, s89, {WS_O}")
k(f"s_lshl_b32 s90, s88, 4\ns_add_u32 s90, s90, s57\ns_lshl_b32 s90, s90, 2\ns_add_u32 s90, s90, {sFL}\ns_add_u32 s90, s90, {FC}")
k(f"s_mov_b32 s91, {f2u(28 ** -0.5 * LOG2E)}")
def both(f):
    for qt in range(2): f(S + 8 * qt, MX + 2 * qt, qt)
both(lambda s0, mx, qt: k(f"v_max3_f32 v{mx}, v{s0}, v{s0+1}, v{s0+2}\nv_max3_f32 v{mx+1}, v{s0+3}, v{s0+4}, v{s0+5}"))
both(lambda s0, mx, qt: k(f"v_max3_f32 v{mx}, v{mx}, v{s0+6}, v{s0+7}\nv_max_f32 v{mx}, v{mx}, v{mx+1}"))
def xred(op):
    for st in (16, 32):
        both(lambda s0, mx, qt: k(f"v_mov_b32 v{mx+1}, v{mx}"))
        both(lambda s0, mx, qt: k(f"v_permlane{st}_swap_b32 v{mx}, v{mx+1}"))
        both(lambda s0, mx, qt: k(f"{op} v{mx}, v{mx}, v{mx+1}"))
xred("v_max_f32")
both(lambda s0, mx, qt: k(f"v_mul_f32 v{mx}, s91, v{mx}"))
both(lambda s0, mx, qt: [k(f"v_fma_f32 v{s0+r}, v{s0+r}, s91, -v{mx}") for r in range(8)])
both(lambda s0, mx, qt: [k(f"v_exp_f32 v{s0+r}, v{s0+r}") for r in range(8)])
both(lambda s0, mx, qt: k(f"v_add_f32 v{mx}, v{s0}, v{s0+1}\nv_add_f32 v{mx+1}, v{s0+2}, v{s0+3}"))
both(lambda s0, mx, qt: k(f"v_add_f32 v{mx}, v{mx}, v{s0+4}\nv_add_f32 v{mx+1}, v{mx+1}, v{s0+5}"))
both(lambda s0, mx, qt: k(f"v_add_f32 v{mx}, v{mx}, v{s0+6}\nv_add_f32 v{mx+1}, v{mx+1}, v{s0+7}"))
both(lambda s0, mx, qt: k(f"v_add_f32 v{mx}, v{mx}, v{mx+1}"))
xred("v_add_f32")
both(lambda s0, mx, qt: k(f"v_rcp_f32 v{mx}, v{mx}"))
both(lambda s0, mx, qt: [k(f"v_mul_f32 v{s0+r}, v{s0+r}, v{mx}") for r in range(8)])
both(lambda s0, mx, qt: [k(f"v_cvt_pk_bf16_f32 v{P+4*qt+r}, v{s0+2*r}, v{s0+2*r+1}") for r in range(4)])
for qt in range(2):
    for dt in range(2):
        k(f"v_mfma_f32_16x16x32_bf16 {v(O+8*qt+4*dt,4)}, {v(VF+6*dt+2*qt,4)}, {v(P+4*qt,4)}, 0")
k(f"v_mov_b32 v{t1}, v{t0}\ns_mov_b32 exec_lo, 0\ns_mov_b32 exec_hi, 0xffff0000\nv_mov_b32 v{t1}, 0x7f000000\ns_mov_b64 exec, -1")
for qt in range(2):
    for dt in range(2):
        o = O + 8 * qt + 4 * dt
        k(f"v_cvt_pk_bf16_f32 v{o}, v{o}, v{o+1}\nv_cvt_pk_bf16_f32 v{o+1}, v{o+2}, v{o+3}")
dual([f"buffer_store_dwordx2 {v(O+8*qt+4*dt,2)}, v{t1 if dt else t0}, {WS}, s89 offen offset:{256*qt+1024*dt}" for qt in range(2) for dt in range(2)])
set_flag("s90")
stamp(8)
k.wait_all_lg()
k.assert_no_pending_regs()
main_state = None

k.join("L_p2")
k(f"s_cmp_ge_u32 {sI}, 28\ns_cbranch_scc1 L_spm")
G = Alloc(BASE)
vWa = [G(), G()]; vDG = G(); vDU = G(); vDD = G(); vW3 = [G(), G(), G(), G()]; vW4 = [[G(), G(), G()], [G(), G(), G()]]
WF2 = [G(16), G(16)]; AC = G(64); AF = G(64); NR = 16
assert G.n <= 255, G.n
def wgu_patterns():
    k(f"v_lshrrev_b32 v{t0}, 3, v{vLANE}\nv_mul_u32_u24 v{t1}, 3584, v{t0}\nv_and_b32 v{t0}, 2, v{t0}\nv_and_b32 v{t2}, 7, v{vLANE}\nv_xor_b32 v{t2}, v{t2}, v{t0}")
    k(f"v_lshl_add_u32 v{vDG}, v{t2}, 4, v{t1}\nv_xor_b32 v{t2}, 4, v{t2}\nv_lshl_add_u32 v{vDU}, v{t2}, 4, v{t1}")
    k(f"s_lshl_b32 s88, {sI}, 7\nv_add_u32 v{vDG}, s88, v{vDG}\nv_add_u32 v{vDU}, s88, v{vDU}")
def w64_pattern(dst):
    k(f"v_lshrrev_b32 v{t0}, 3, v{vLANE}\nv_mul_u32_u24 v{dst}, 896, v{t0}\nv_lshlrev_b32 v{t0}, 1, v{t0}\nv_and_b32 v{t0}, 4, v{t0}\nv_and_b32 v{t1}, 7, v{vLANE}\nv_xor_b32 v{t1}, v{t1}, v{t0}")
    k(f"v_lshl_add_u32 v{dst}, v{t1}, 4, v{dst}\ns_lshl_b32 s88, s60, 7\nv_add_u32 v{dst}, s88, v{dst}")
gutok = {}
def dma_gu(unit):
    mat, m = unit
    k(f"s_add_u32 m0, s85, {(L_G if mat == 'G' else L_U)+8192*m}\ns_add_u32 s88, s84, {64*3584*m}")
    gutok[unit] = k(f"buffer_load_dwordx4 v{vDG if mat == 'G' else vDU}, {WG if mat == 'G' else WU}, s88 offen lds")
k(f"s_mul_i32 s84, {sW}, {8*3584}\ns_lshl_b32 s85, {sW}, 10")
wgu_patterns()
k(f"s_lshr_b32 s88, {sW}, 2\ns_bfe_u32 s89, {sW}, 0x10001")
k(f"v_lshrrev_b32 v{t0}, 1, v{vRR}\nv_xor_b32 v{t0}, s88, v{t0}\nv_lshlrev_b32 v{t0}, 6, v{t0}\nv_xor_b32 v{t1}, s89, v{vNG}\nv_lshl_add_u32 v{t0}, v{t1}, 5, v{t0}\nv_lshl_add_u32 v{t3}, v{vCC}, 3, v{t0}")
k(f"s_lshr_b32 s91, {sW}, 1")
k(f"v_lshl_add_u32 v{t1}, v{vHF}, 3, v{vRR}\nv_lshl_add_u32 v{vWa[0]}, v{t1}, 7, v{t3}\ns_mul_i32 s88, s91, {7*2048}\ns_add_u32 s88, s88, {L_WO}\nv_add_u32 v{vWa[0]}, s88, v{vWa[0]}\nv_xor_b32 v{vWa[1]}, 64, v{vWa[0]}")
k(f"v_lshl_add_u32 v{t1}, v{vHF}, 2, v{vRR}\nv_lshl_add_u32 v{vW4[0][0]}, v{t1}, 7, v{t3}\ns_lshl_b32 s88, s91, 11\nv_add_u32 v{vW4[0][0]}, s88, v{vW4[0][0]}\nv_xor_b32 v{vW4[1][0]}, 64, v{vW4[0][0]}")
for a_ in range(2):
    for z in (1, 2): k(f"v_add_u32 v{vW4[a_][z]}, {57344*z}, v{vW4[a_][0]}")
barrier()
stamp(9)
def p2_rdw(i, a_):
    for q in range(2): k(f"ds_read_b64_tr_b16 {v(WF2[i&1]+4*a_+2*q,2)}, v{vWa[a_]} offset:{2048*i+512*q}")
for a_ in range(2): p2_rdw(0, a_)
k(f"s_lshl_b32 s88, s62, 6\ns_lshl_b32 s89, s91, 4\ns_add_u32 s88, s88, s89\ns_add_u32 s88, s88, {sFL}\ns_add_u32 s88, s88, {FC}")
k(f"s_lshl_b32 s92, {sT}, 3\ns_add_u32 s92, s92, s62")
k(f"s_mul_i32 s93, s92, 28672\ns_mul_i32 s89, s91, 7168\ns_add_u32 s93, s93, s89\ns_add_u32 s93, s93, {WS_O}\ns_add_u32 s94, s93, 4096")
poll("s88", 4)
stamp(10)
for i in range(7):
    k(f"buffer_load_dwordx4 {v(AF+4*i,4)}, v{vL16}, {WS}, {'s93' if i < 4 else 's94'} offen offset:{1024*(i%4)} sc1")
for u_ in PART2: dma_gu(u_)
for i in range(7):
    for a_ in range(2):
        c = "0" if i == 0 else v(AC + 16 * a_, 16)
        k(f"v_mfma_f32_32x32x16_bf16 {v(AC+16*a_,16)}, {v(WF2[i&1]+4*a_,4)}, {v(AF+4*i,4)}, {c}")
        if i + 1 < 7: p2_rdw(i + 1, a_)
RD = AF
def reduce_write(red):
    for j in range(1, 4):
        k(f"s_xor_b32 s88, {sW}, {2*j}\ns_mul_i32 s88, s88, 6144\ns_add_u32 s88, s88, {red+(j-1)*2048}\nv_add_u32 v{t0+j-1}, s88, v{vL16}")
    for j in range(1, 4):
        for i in range(2): k(f"ds_write_b128 v{t0+j-1}, {v(AC+8*j+4*i,4)} offset:{1024*i}")
def reduce_read(red):
    k(f"s_mul_i32 s88, {sW}, 6144\ns_add_u32 s88, s88, {red}\nv_add_u32 v{t0}, s88, v{vL16}")
    for i in range(6): k(f"ds_read_b128 {v(RD+4*i,4)}, v{t0} offset:{1024*i}")
    for j in range(3):
        for i in range(4): k(f"v_pk_add_f32 {v(AC+2*i,2)}, {v(AC+2*i,2)}, {v(RD+8*j+2*i,2)}")
def resid(gv):
    T = AC + 8
    for i in range(4):
        a0 = AC + 2 * i
        rnd2(a0, a0 + 1, t1)
        k(f"v_pk_mul_f32 {v(a0,2)}, {v(a0,2)}, {v(gv+2*i,2)}")
        rnd2(a0, a0 + 1, t1)
        unpack(T, XR + i)
        k(f"v_pk_add_f32 {v(a0,2)}, {v(a0,2)}, {v(T,2)}\nv_cvt_pk_bf16_f32 v{XR+i}, v{a0}, v{a0+1}")
stamp(11)
barrier()
reduce_write(L_RED)
for u_ in PART3: dma_gu(u_)
barrier()
reduce_read(L_RED)
resid(MV)
for i in range(4): unpack(AC + 2 * i, XR + i)
SS = AC + 8
k(f"v_add_f32 v{SS}, v{AC}, v{AC+1}\nv_add_f32 v{t1}, v{AC+2}, v{AC+3}\nv_add_f32 v{SS}, v{SS}, v{AC+4}\nv_add_f32 v{t1}, v{t1}, v{AC+5}\nv_add_f32 v{SS}, v{SS}, v{AC+6}\nv_add_f32 v{t1}, v{t1}, v{AC+7}\nv_add_f32 v{SS}, v{SS}, v{t1}")
swapred(SS, t1, "v_add_f32", (32,))
k(f"v_mul_f32 v{t2}, {f2u(1/16)}, v{SS}\nv_mov_b32 v{SS+1}, 0")
for i in range(8): k(f"v_sub_f32 v{t1}, v{AC+i}, v{t2}\nv_fmac_f32 v{SS+1}, v{t1}, v{t1}")
swapred(SS + 1, t1, "v_add_f32", (32,))
k(f"v_and_b32 v{t3}, 31, v{vLANE}\nv_lshlrev_b32 v{t3}, 3, v{t3}\nv_add_u32 v{t1}, s88, v{t3}")
k(f"ds_write_b64 v{t1}, {v(SS,2)}")
k(f"s_lshl_b32 s93, s92, 11\ns_add_u32 s93, s93, {WS_STAT}")
k(f"s_lshl_b32 s94, s62, 5\ns_add_u32 s94, s94, {sFL}\ns_add_u32 s94, s94, {FD}")
barrier()
stamp(12)
k(f"s_cmp_ge_u32 {sW}, 2\ns_cbranch_scc1 L_nostat")
PQ = AC + 12
for q in range(4): k(f"ds_read_b64 {v(PQ+2*q,2)}, v{t1} offset:{2*6144*q}")
k(f"v_add_f32 v{SS}, v{PQ}, v{PQ+2}\nv_add_f32 v{t2}, v{PQ+4}, v{PQ+6}\nv_add_f32 v{SS}, v{SS}, v{t2}\nv_mul_f32 v{t2}, {f2u(1/64)}, v{SS}")
k(f"s_mov_b32 s88, {f2u(1/16)}\ns_mov_b32 s89, {f2u(16.0)}\nv_mov_b32 v{SS+1}, 0")
for q in range(4):
    k(f"v_fma_f32 v{t0}, v{PQ+2*q}, s88, -v{t2}\nv_mul_f32 v{t0}, v{t0}, v{t0}\nv_fma_f32 v{t0}, v{t0}, s89, v{PQ+2*q+1}\nv_add_f32 v{SS+1}, v{SS+1}, v{t0}")
k(f"s_lshl_b32 s88, s60, 8\ns_add_u32 s88, s88, s93\ns_lshl_b32 s89, s60, 2\ns_add_u32 s89, s89, s94\ns_mov_b32 exec_hi, 0")
dual([f"buffer_store_dwordx2 {v(SS,2)}, v{t3}, {WS}, s88 offen"])
set_flag("s89")
k.join("L_nostat")
k(f"v_lshl_add_u32 v{t3}, v{vHF}, 10, v{t3}\nv_mov_b32 v{PQ+6}, 0")
poll("s94", 7)
stamp(13)
for q in range(3): k(f"buffer_load_dwordx2 {v(PQ+2*q,2)}, v{t3}, {WS}, s93 offen offset:{256*q} sc1")
k(f"s_mov_b32 exec_hi, 0\nbuffer_load_dwordx2 {v(PQ+6,2)}, v{t3}, {WS}, s93 offen offset:768 sc1\ns_mov_b32 exec_hi, -1")
k(f"s_mul_i32 s93, s92, 28672\ns_lshl_b32 s88, s63, 10\ns_add_u32 s93, s93, s88\ns_add_u32 s93, s93, {WS_H2}")
k(f"s_lshl_b32 s94, s62, 7\ns_lshl_b32 s88, s63, 2\ns_add_u32 s94, s94, s88\ns_add_u32 s94, s94, {sFL}\ns_add_u32 s94, s94, {FE}")
k(f"s_mov_b32 s88, {f2u(1/64)}\ns_mov_b32 s89, {f2u(64.0)}")
k(f"v_add_f32 v{SS}, v{PQ}, v{PQ+2}\nv_add_f32 v{t2}, v{PQ+4}, v{PQ+6}\nv_add_f32 v{SS}, v{SS}, v{t2}")
swapred(SS, t2, "v_add_f32", (32,))
k(f"v_mul_f32 v{SS}, {f2u(1/448)}, v{SS}\nv_mov_b32 v{SS+1}, 0")
for q in range(4):
    if q == 3: k("s_mov_b32 exec_hi, 0")
    k(f"v_fma_f32 v{t0}, v{PQ+2*q}, s88, -v{SS}\nv_mul_f32 v{t0}, v{t0}, v{t0}\nv_fma_f32 v{t0}, v{t0}, s89, v{PQ+2*q+1}\nv_add_f32 v{SS+1}, v{SS+1}, v{t0}")
k("s_mov_b32 exec_hi, -1")
swapred(SS + 1, t2, "v_add_f32", (32,))
k(f"v_mul_f32 v{SS+1}, {f2u(1/448)}, v{SS+1}")
ln_scalars(SS, SS + 1, t2)
H2 = AC + 24
for i in range(4):
    a0 = AC + 2 * i
    k(f"v_sub_f32 v{a0}, v{a0}, v{SS}\nv_sub_f32 v{a0+1}, v{a0+1}, v{SS}"); rnd2(a0, a0 + 1, t1)
    k(f"v_mul_f32 v{a0}, v{a0}, v{t2}\nv_mul_f32 v{a0+1}, v{a0+1}, v{t2}"); rnd2(a0, a0 + 1, t1)
    k(f"v_pk_mul_f32 {v(a0,2)}, {v(a0,2)}, {v(MV+16+2*i,2)}"); rnd2(a0, a0 + 1, t1)
    k(f"v_pk_add_f32 {v(a0,2)}, {v(a0,2)}, {v(MV+8+2*i,2)}\nv_cvt_pk_bf16_f32 v{H2+i}, v{a0}, v{a0+1}")
dual([f"buffer_store_dwordx4 {v(H2,4)}, v{vL16}, {WS}, s93 offen"])
set_flag("s94")
stamp(14)
k(f"v_lshl_add_u32 v{t1}, v{vHF}, 2, v{vRR}\nv_lshlrev_b32 v{t1}, 7, v{t1}\nv_lshl_add_u32 v{t1}, v{vCC}, 3, v{t1}")
k(f"v_lshrrev_b32 v{t0}, 1, v{vRR}\nv_lshl_add_u32 v{t0}, v{vNG}, 1, v{t0}\nv_mul_u32_u24 v{t2}, {L_U}, v{vNG}\nv_add_u32 v{t1}, v{t1}, v{t2}\nv_lshl_add_u32 v{vW3[0]}, v{t0}, 5, v{t1}")
for s_ in range(1, 4): k(f"v_xor_b32 v{vW3[s_]}, {32*s_}, v{vW3[0]}")
w64_pattern(vDD)
k(f"s_mul_i32 s95, s91, {448*896}\ns_and_b32 s88, {sW}, 1\ns_mul_i32 s88, s88, {8*896}\ns_add_u32 s95, s95, s88\ns_lshl_b32 s97, {sW}, 10")
BLK = [14, 15, 16, 17, 18, 19] + [b for r in range(7) for b in (r, r + 7)]
BLK = BLK + BLK[:8]
def dma_wd(i):
    k(f"s_add_u32 m0, s97, {8192*BLK[i]}\ns_add_u32 s88, s95, {16*896*i}")
    return k(f"buffer_load_dwordx4 v{vDD}, {WD}, s88 offen lds")
k(f"s_lshl_b32 s88, {sT}, 3\ns_add_u32 s88, s88, {sW}\ns_mul_i32 s93, s88, 28672\ns_add_u32 s93, s93, {WS_H2}")
k(f"s_mul_i32 s96, s88, {112*1024}\ns_lshl_b32 s89, {sI}, 12\ns_add_u32 s96, s96, s89\ns_add_u32 s96, s96, {WS_HH}")
k(f"s_lshl_b32 s94, {sW}, 7\ns_add_u32 s94, s94, {sFL}\ns_add_u32 s89, s94, {FE}")
barrier()
def p3_rdw(ks, s_):
    for q in range(2): k(f"ds_read_b64_tr_b16 {v(WF2[ks&1]+4*s_+2*q,2)}, v{vW3[s_]} offset:{2048*ks+1024*q}")
for s_ in range(4): p3_rdw(0, s_)
poll("s89", 28)
stamp(15)
def p3_ld(ks):
    if ks % 4 == 0 and ks: k("s_add_u32 s93, s93, 4096")
    k(f"buffer_load_dwordx4 {v(AF+4*(ks%NR),4)}, v{vL16}, {WS}, s93 offen offset:{1024*(ks%4)} sc1")
PD3 = 5
for ks in range(PD3): p3_ld(ks)
wdq = list(range(6))
guq = [u_ for m in range(7) for u_ in (('G', m), ('U', m)) if u_ not in PART1 + PART2 + PART3]
gutok.clear()
for ks in range(28):
    if ks % 4 == 3:
        m = ks // 4
        for u_ in (('G', m + 1), ('U', m + 1)):
            assert u_ not in guq
            if u_ in gutok: k.wait_vm(gutok[u_])
        k("s_barrier")
        if m >= 1: wdq += [6 + 2 * (m - 1), 7 + 2 * (m - 1)]
    for s_ in range(4):
        c = "0" if ks == 0 else v(AC + 16 * s_, 16)
        k(f"v_mfma_f32_32x32x16_bf16 {v(AC+16*s_,16)}, {v(WF2[ks&1]+4*s_,4)}, {v(AF+4*(ks%NR),4)}, {c}")
        if ks + 1 < 28: p3_rdw(ks + 1, s_)
        if s_ == 0 and ks + PD3 < 28: p3_ld(ks + PD3)
        if s_ == 2:
            if guq: dma_gu(guq.pop(0))
            elif wdq and ks >= WD_START: dma_wd(wdq.pop(0))
k("s_barrier")
wdq += [18, 19]
stamp(16)
while wdq: dma_wd(wdq.pop(0))
c0 = -2.0 * math.sqrt(2.0 / math.pi) * LOG2E
c1 = c0 * 0.044715
k(f"s_mov_b32 s88, {f2u(c1)}\ns_mov_b32 s89, {f2u(c1)}\nv_mov_b32 v{t0}, {f2u(c0)}\nv_mov_b32 v{t1}, {f2u(c0)}\ns_mov_b32 s98, 1.0\ns_mov_b32 s99, 1.0")
assert t0 % 2 == 0
for s_ in range(4):
    g0 = AC + 16 * s_; u0 = g0 + 8; T = WF2[s_ & 1]; Oo = AF + 4 * s_
    for i in range(4): k(f"v_pk_mul_f32 {v(T+2*i,2)}, {v(g0+2*i,2)}, {v(g0+2*i,2)}")
    for i in range(4): k(f"v_pk_fma_f32 {v(T+2*i,2)}, {v(T+2*i,2)}, s[88:89], {v(t0,2)}")
    for i in range(4): k(f"v_pk_mul_f32 {v(T+2*i,2)}, {v(T+2*i,2)}, {v(g0+2*i,2)}")
    for i in range(8): k(f"v_exp_f32 v{T+i}, v{T+i}")
    for i in range(4): k(f"v_pk_mul_f32 {v(g0+2*i,2)}, {v(g0+2*i,2)}, {v(u0+2*i,2)}")
    for i in range(4): k(f"v_pk_add_f32 {v(T+2*i,2)}, {v(T+2*i,2)}, s[98:99]")
    for i in range(8): k(f"v_rcp_f32 v{T+i}, v{T+i}")
    for i in range(4): k(f"v_pk_mul_f32 {v(g0+2*i,2)}, {v(g0+2*i,2)}, {v(T+2*i,2)}")
    for i in range(4): k(f"v_cvt_pk_bf16_f32 v{Oo+i}, v{g0+2*i}, v{g0+2*i+1}")
    dual([f"buffer_store_dwordx4 {v(Oo,4)}, v{vL16}, {WS}, s96 offen offset:{1024*s_}"])
k(f"s_lshl_b32 s88, {sI}, 2\ns_add_u32 s94, s94, s88\ns_add_u32 s94, s94, {FF}")
set_flag("s94")
stamp(17)
k(f"s_lshl_b32 s89, s62, 7\ns_mul_i32 s88, s91, 28\ns_add_u32 s89, s89, s88\ns_add_u32 s89, s89, {sFL}\ns_add_u32 s89, s89, {FF}")
k(f"s_mul_i32 s93, s92, {112*1024}\ns_mul_i32 s88, s91, 28672\ns_add_u32 s93, s93, s88\ns_add_u32 s93, s93, {WS_HH}")
barrier()
def p4_rdw(i, a_):
    off = 8192 * BLK[i]; z = off // 57344; off -= z * 57344
    for q in range(2): k(f"ds_read_b64_tr_b16 {v(WF2[i&1]+4*a_+2*q,2)}, v{vW4[a_][z]} offset:{off+1024*q}")
for a_ in range(2): p4_rdw(0, a_)
poll("s89", 7)
stamp(18)
PD4 = 6
for i in range(PD4): p3_ld(i)
late = None
for i in range(28):
    if i == 19:
        k.wait_vm(late); k("s_barrier")
    for a_ in range(2):
        c = "0" if i == 0 else v(AC + 16 * a_, 16)
        k(f"v_mfma_f32_32x32x16_bf16 {v(AC+16*a_,16)}, {v(WF2[i&1]+4*a_,4)}, {v(AF+4*(i%NR),4)}, {c}")
        if i + 1 < 28: p4_rdw(i + 1, a_)
        if a_ == 0 and i + PD4 < 28: p3_ld(i + PD4)
        if a_ == 1 and 8 <= i < 16: late = dma_wd(20 + i - 8)
    if i == 7: k("s_barrier")
stamp(19)
L_RED4 = 8192
reduce_write(L_RED4)
k(f"s_mul_i32 s93, s92, 28672\ns_lshl_b32 s89, s63, 5\ns_add_u32 s93, s93, s89")
k(f"v_and_b32 v{t3}, 31, v{vLANE}\nv_mul_u32_u24 v{t3}, 896, v{t3}\nv_lshl_add_u32 v{t3}, v{vHF}, 4, v{t3}")
barrier()
stamp(20)
reduce_read(L_RED4)
resid(MV + 24)
k(f"v_permlane32_swap_b32 v{XR}, v{XR+2}\nv_permlane32_swap_b32 v{XR+1}, v{XR+3}")
k(f"buffer_store_dwordx4 {v(XR,4)}, v{t3}, {OUT}, s93 offen")
k("s_branch L_fin")
k.restore_at("L_spm")
k("s_barrier")
k.join("L_fin")
stamp_out()
k("L_end:\ns_endpgm")


k.restore_at("L_fmain")
p1_setup()
k(f"s_cmp_lg_u32 {sW}, 0\ns_cbranch_scc1 L_f1")
k("s_sleep 32")
check_team()
k.join("L_f1")
get_mode()
k("s_branch L_p1")

k.restore_at("L_helper")
Hh = Alloc(BASE + 64)
vD = Hh(); vQ = [Hh(), Hh(), Hh()]; vPF = Hh(); hW0 = Hh(); hW1 = Hh(); hT = Hh(); HA = Hh(16); HWF = [Hh(8), Hh(8)]; HB = [Hh(4), Hh(4)]; HX = Hh(56); SC = Hh(12)
assert Hh.n < 255
def prefetch(srd_, lo, hi, sidx, n):
    per = -(-(hi - lo) // n // 128) * 128
    k(f"s_mul_i32 s88, {sidx}, {per}\ns_add_u32 s88, s88, {lo}")
    full, rest = per // 8192, per % 8192 // 128
    for i in range(full):
        k(f"buffer_load_dword v{DUM}, v{vPF}, {srd_}, s88 offen\ns_add_u32 s88, s88, 8192")
    if rest:
        m = (1 << rest) - 1
        k(f"s_mov_b32 exec_lo, {m & 0xffffffff}\ns_mov_b32 exec_hi, {m >> 32}\nbuffer_load_dword v{DUM}, v{vPF}, {srd_}, s88 offen\ns_mov_b64 exec, -1")
def gemv(sG, slds):
    k(f"buffer_load_dwordx4 {v(SC,4)}, v{vL16}, {C}, 0 offen")
    k(f"v_lshrrev_b32 v{t0}, 2, v{vLANE}\nv_mul_u32_u24 v{t0}, 5376, v{t0}\nv_lshl_add_u32 v{t0}, v{vCC}, 4, v{t0}\ns_lshl_b32 s88, {sG}, 6")
    tk = []
    for ks in range(28):
        k(f"s_add_u32 m0, {slds}, {1024*ks}")
        tk.append(k(f"buffer_load_dwordx4 v{t0}, {WM}, s88 offen lds"))
        k(f"s_add_u32 s88, s88, {16*5376}")
        if ks == 11:
            for j in range(4): unpack(SC + 4 + 2 * j, SC + j)
            for j in range(8):
                c_ = SC + 4 + j
                k(f"v_mul_f32 v{t1}, {f2u(-LOG2E)}, v{c_}\nv_exp_f32 v{t1}, v{t1}\nv_add_f32 v{t1}, 1.0, v{t1}\nv_rcp_f32 v{t1}, v{t1}\nv_mul_f32 v{c_}, v{c_}, v{t1}")
            for j in range(4): k(f"v_cvt_pk_bf16_f32 v{SC+j}, v{SC+4+2*j}, v{SC+5+2*j}")
            k(f"v_add_u32 v{t1}, {slds}, v{vL16}\nds_write_b128 v{t1}, {v(SC,4)} offset:28672")
    k(f"v_lshl_add_u32 v{t1}, v{vHF}, 3, v{vRR}\nv_lshlrev_b32 v{hW0}, 6, v{t1}\nv_lshl_add_u32 v{hW0}, v{vNG}, 5, v{hW0}\nv_lshl_add_u32 v{hW0}, v{vCC}, 3, v{hW0}\nv_add_u32 v{hW0}, {slds}, v{hW0}")
    k(f"v_lshlrev_b32 v{hT}, 4, v{vHF}\nv_add_u32 v{hT}, {slds}, v{hT}")
    k(f"s_mul_i32 s89, {sG}, 147\ns_lshr_b32 s89, s89, 11\ns_mul_i32 s90, s89, 14\ns_sub_u32 s90, {sG}, s90\ns_lshl_b32 s90, s90, 6\ns_mul_i32 s91, s89, 1792\ns_add_u32 s90, s90, s91")
    k("s_cmp_eq_u32 s89, 1\ns_cselect_b32 s91, 1.0, 0\ns_cmp_eq_u32 s89, 4\ns_cselect_b32 s91, 1.0, s91")
    k.wait_all_lg()
    def rd(ks):
        k.wait_vm(tk[ks])
        for q in range(2): k(f"ds_read_b64_tr_b16 {v(HWF[ks&1]+2*q,2)}, v{hW0} offset:{1024*ks+256*q}")
        k(f"ds_read_b128 {v(HB[ks&1],4)}, v{hT} offset:{28672+32*ks}")
    rd(0)
    for ks in range(28):
        if ks + 1 < 28: rd(ks + 1)
        c = "0" if ks == 0 else v(HA, 16)
        k(f"v_mfma_f32_32x32x16_bf16 {v(HA,16)}, {v(HWF[ks&1],4)}, {v(HB[ks&1],4)}, {c}")
    k(f"v_mul_u32_u24 v{t0}, 896, v{vHF}")
    for j in range(8):
        a0 = HA + 2 * j
        rnd2(a0, a0 + 1, t1)
        k(f"v_add_f32 v{a0}, s91, v{a0}\nv_add_f32 v{a0+1}, s91, v{a0+1}")
        rnd2(a0, a0 + 1, t1)
def wq_patterns():
    k(f"s_mul_i32 s88, s57, 56\ns_and_b32 s88, s88, 0xfffffff0")
    for p in range(3):
        k(f"v_add_u32 v{t0}, {64*p}, v{vLANE}\nv_mul_u32_u24 v{t1}, 43691, v{t0}\nv_lshrrev_b32 v{t1}, 19, v{t1}\nv_mul_u32_u24 v{t2}, 12, v{t1}\nv_sub_u32 v{t0}, v{t0}, v{t2}")
        k(f"v_mul_u32_u24 v{vQ[p]}, 2688, v{t1}\nv_lshrrev_b32 v{t1}, 2, v{t0}\nv_mul_u32_u24 v{t1}, 896, v{t1}\nv_and_b32 v{t0}, 3, v{t0}\nv_lshl_add_u32 v{t1}, v{t0}, 4, v{t1}\nv_add3_u32 v{vQ[p]}, v{vQ[p]}, v{t1}, s88")
    k(f"s_and_b32 s88, {sW}, 1\ns_mul_i32 s92, s88, 43008\ns_mul_i32 s93, s88, 3072")
def wq_dma(i):
    k(f"s_add_u32 s88, s92, {2*i*43008}")
    for p in range(3):
        k(f"s_add_u32 m0, s93, {L_WQ+2*i*3072+1024*p}")
        tk = k(f"buffer_load_dwordx4 v{vQ[p]}, {WQ}, s88 offen lds")
    return tk
def wo_setup():
    w64_pattern(vD)
    k(f"s_and_b32 s88, {sW}, 1\ns_mul_i32 s94, s88, {8*896}\ns_lshl_b32 s95, s88, 10")
def wo_dma(i):
    k(f"s_add_u32 m0, s95, {L_WO+2048*i}\ns_add_u32 s88, s94, {16*896*i}")
    return k(f"buffer_load_dwordx4 v{vD}, {WO}, s88 offen lds")
def modl_fetch():
    lp, ld = k.newlabel("p"), k.newlabel("d")
    k(f"v_and_b32 v{vPA}, 7, v{vLANE}\nv_lshlrev_b32 v{vPA}, 5, v{vPA}\ns_mov_b32 s99, {SPIN}\ns_mov_b32 s98, 0x80808080")
    k(f"{lp}:\nbuffer_load_dword v{vPD}, v{vPA}, {DBG}, 0 offen offset:28 sc1\ns_waitcnt vmcnt(0)")
    k(f"v_and_b32 v{vPD}, s98, v{vPD}\nv_cmp_ne_u32 vcc, s98, v{vPD}\ns_sub_u32 s99, s99, 1\ns_cbranch_vccz {ld}\ns_sleep 4\ns_cmp_lg_u32 s99, 0\ns_cbranch_scc1 {lp}\n{ld}:")
    k(f"v_lshrrev_b32 v{t0}, 3, v{vLANE}\nv_mul_u32_u24 v{t0}, 896, v{t0}\nv_and_b32 v{t1}, 7, v{vLANE}\nv_lshl_add_u32 v{t0}, v{t1}, 4, v{t0}")
    k(f"s_lshl_b32 s88, s60, 7\ns_add_u32 s88, s88, {WS_MODB}")
    k(f"buffer_load_dwordx4 {v(HX,4)}, v{t0}, {WS}, s88 offen sc1")
    k(f"v_add_u32 v{t1}, {L_MODL}, v{vL16}\nds_write_b128 v{t1}, {v(HX,4)}")
    k.wait_all_lg()
k(f"v_lshlrev_b32 v{vPF}, 7, v{vLANE}\nv_mov_b32 v{vD}, 0")
k(f"s_cmp_ge_u32 {sW}, 6\ns_cbranch_scc1 L_h67")
k(f"s_and_b32 s96, {sW}, 1\ns_mul_i32 s97, s96, {L_GV2-L_GV}\ns_add_u32 s97, s97, {L_GV}")
k(f"s_lshl_b32 s92, {sI}, 1\ns_add_u32 s92, s92, s96")
k(f"s_sub_u32 s93, s92, 56\ns_mul_i32 s94, {sT}, 7\ns_add_u32 s94, s94, s93\ns_add_u32 s94, s94, 28")
k(f"s_cmp_lt_u32 s92, 28\ns_cbranch_scc1 L_gv\ns_mov_b32 s92, s94\ns_cmp_lt_u32 s93, 7\ns_cbranch_scc0 L_nogv")
k("L_gv:")
gemv("s92", "s97")
stamp(1)
k(f"s_cmp_ge_u32 {sI}, 28\ns_cbranch_scc1 L_gvb")
get_mode()
k(f"s_add_u32 s90, s90, {sFL}\ns_add_u32 s90, s90, {WS_MODA}\ns_lshl_b32 s89, s92, 2\ns_add_u32 s89, s89, {sFL}\ns_mov_b32 exec_lo, 1\ns_mov_b32 exec_hi, 1")
dual([f"buffer_store_dwordx4 {v(HA+4*i,4)}, v{t0}, {WS}, s90 offen offset:{16*i}" for i in range(4)])
set_flag("s89")
stamp(2)
k("s_branch L_nogv")
k.restore_at("L_gvb")
k(f"s_add_u32 s90, s90, {WS_MODB-3584}\ns_mov_b32 exec_lo, 1\ns_mov_b32 exec_hi, 1")
for i in range(4): k(f"buffer_store_dwordx4 {v(HA+4*i,4)}, v{t0}, {WS}, s90 offen offset:{16*i} sc1")
k("s_mov_b64 exec, -1")
k.wait_all_vm()
k.join("L_nogv")
get_mode()
k(f"s_cmp_ge_u32 {sI}, 16\ns_cbranch_scc1 L_h45f")
wq_patterns(); wo_setup()
k(f"s_mul_i32 s89, {sI}, 72\ns_add_u32 s89, s89, {sFL}\ns_add_u32 s89, s89, {FB}")
poll("s89", 18)
stamp(3)
wt = [wq_dma(i) for i in range(4)]
nwo = 0
for m in range(7):
    k.wait_vm(wt[2 * m + 1]); k("s_barrier")
    for i in (2 * m + 4, 2 * m + 5):
        if i < 14: wt.append(wq_dma(i))
    if m >= 5:
        for _ in range(14): wo_dma(nwo); nwo += 1
k("s_branch L_h45j")
k.restore_at("L_h45f")
k("s_barrier")
k(f"s_cmp_lt_u32 {sI}, 28\ns_cbranch_scc1 L_nomark\ns_cmp_lg_u32 {sW}, 4\ns_cbranch_scc1 L_nomark")
k(f"s_or_b32 s88, {sTAG}, 0x80\nv_mov_b32 v{t3}, s88\ns_mov_b64 exec, 1\nbuffer_store_byte v{t3}, off, {DBG}, s86 sc1\ns_mov_b64 exec, -1")
k.join("L_nomark")
for m in range(6): k("s_barrier")
k.join("L_h45j")
xres_load()
k(f"s_cmp_lg_u32 {sW}, 4\ns_cbranch_scc1 L_h5x\ns_cmp_ge_u32 {sI}, 28\ns_cbranch_scc1 L_h5x")
modl_fetch()
k("L_h5x:")
k("s_waitcnt vmcnt(0)")
k.join()
stamp(6)
k("s_barrier")
k("s_branch L_ha2")
k.restore_at("L_h67")
k(f"s_cmp_ge_u32 {sI}, 16\ns_cbranch_scc1 L_h67f")
k(f"s_mul_i32 s91, {sI}, 18\ns_mul_i32 s92, {sW}, 3\ns_add_u32 s91, s91, s92\ns_sub_u32 s91, s91, 6")
rows_load("s91")
rows_norm()
get_mode()
rows_publish("s91")
k("s_branch L_h67j")
k.restore_at("L_h67f")
k(f"v_mul_u32_u24 v{t0}, 4682, v{vLANE}\nv_lshrrev_b32 v{t0}, 16, v{t0}\nv_mul_u32_u24 v{t1}, 14, v{t0}\nv_sub_u32 v{t1}, v{vLANE}, v{t1}\nv_mul_u32_u24 v{t0}, 5376, v{t0}\nv_lshl_add_u32 v{t0}, v{t1}, 7, v{t0}")
k(f"s_and_b32 s88, {sW}, 1\ns_lshl_b32 s88, s88, 6\ns_lshl_b32 s89, s57, 2\ns_add_u32 s88, s88, s89\ns_add_u32 s88, s88, 192\ns_mul_i32 s88, s88, 5376\ns_mov_b32 exec_hi, 0x00ffffff")
for i in range(2): k(f"buffer_load_dword v{DUM}, v{t0}, {WM}, s88 offen\ns_add_u32 s88, s88, {128*5376}")
k("s_mov_b32 exec_hi, -1")
k(f"s_lshl_b32 s91, s57, 1\ns_and_b32 s88, {sW}, 1\ns_add_u32 s91, s91, s88")
prefetch(CODE, 0, 40960, "s91", 32)
wq_patterns()
for i in range(14): wq_dma(i)
stamp(1)
k(f"s_cmp_ge_u32 {sI}, 28\ns_cbranch_scc1 L_nowo")
wo_setup()
k("s_waitcnt vmcnt(30)")
for i in range(28):
    if i == 5: continue
    wo_dma(i)
k.join("L_nowo")
k("s_waitcnt vmcnt(30)")
prefetch(WG, 0, PF0_ROWS * 3584, "s91", 32)
prefetch(WU, 0, PF0_ROWS * 3584, "s91", 32)
stamp(2)
get_mode()
k.join("L_h67j")
k(f"s_sub_u32 s88, s58, 1\ns_lshl_b32 s89, s88, 7\ns_add_u32 s89, s89, {sFL}\ns_add_u32 s89, s89, {FB+64}")
k(f"s_mul_i32 s93, s88, 28672\ns_add_u32 s93, s93, s61\ns_add_u32 s93, s93, 256")
k(f"v_lshrrev_b32 v{t3}, 4, v{vLANE}\nv_and_b32 v{t2}, 15, v{vLANE}\nv_lshlrev_b32 v{hT}, 9, v{t3}\nv_lshl_add_u32 v{hT}, v{t2}, 4, v{hT}")
k(f"s_and_b32 s90, s57, 1\ns_lshl_b32 s90, s90, 3\ns_sub_u32 s91, {sW}, 5\ns_lshl_b32 s91, s91, 6\ns_add_u32 s90, s90, s91")
k(f"v_lshl_add_u32 v{t1}, v{t3}, 3, v{vRR}\nv_mul_u32_u24 v{hW0}, 192, v{t1}\nv_lshl_add_u32 v{hW0}, v{vCC}, 3, v{hW0}\nv_add_u32 v{hW0}, s90, v{hW0}\nv_add_u32 v{hW1}, 43008, v{hW0}")
poll("s89", 16)
stamp(4)
def h_ld(s_):
    if s_ % 2 == 0 and s_: k("s_add_u32 s93, s93, 4096")
    k(f"buffer_load_dwordx4 {v(HX+4*s_,4)}, v{hT}, {WS}, s93 offen offset:{2048*(s_%2)} sc1")
for s_ in range(4): h_ld(s_)
def h_rd(s_):
    base, o = (hW0, s_ * 6144) if s_ < 7 else (hW1, (s_ - 7) * 6144)
    for u in range(2):
        for q in range(2): k(f"ds_read_b64_tr_b16 {v(HWF[s_&1]+4*u+2*q,2)}, v{base} offset:{o+768*q+32*u}")
for m in range(7):
    k("s_barrier")
    if m == 0:
        l = k.newlabel("w5")
        k(f"s_sub_u32 s88, {sI}, 16\ns_cmp_ge_u32 s88, 12\ns_cbranch_scc1 {l}")
        sv = list(k.vmq); wo_dma(5); k.vmq = sv
        k(f"{l}:")
    for s_ in (2 * m, 2 * m + 1): h_rd(s_)
    for s_ in (2 * m + 4, 2 * m + 5):
        if s_ < 14: h_ld(s_)
    for s_ in (2 * m, 2 * m + 1):
        for u in range(2):
            c = "0" if s_ == 0 else v(HA + 4 * u, 4)
            k(f"v_mfma_f32_16x16x32_bf16 {v(HA+4*u,4)}, {v(HWF[s_&1]+4*u,4)}, {v(HX+4*s_,4)}, {c}")
    if m == 5: xres_load()
k(f"s_and_b32 s88, {sW}, 1\ns_mul_i32 s88, s88, {L_V-L_K}\ns_add_u32 s88, s88, {L_K}")
k(f"v_mul_u32_u24 v{hT}, 80, v{t2}\nv_lshl_add_u32 v{hT}, v{t3}, 3, v{hT}\nv_add_u32 v{hT}, s88, v{hT}")
for u in range(2):
    o = HA + 4 * u
    k(f"v_cvt_pk_bf16_f32 v{o}, v{o}, v{o+1}\nv_cvt_pk_bf16_f32 v{o+1}, v{o+2}, v{o+3}")
k("s_waitcnt vmcnt(0)")
stamp(6)
barrier()
for u in range(2): k(f"ds_write_b64 v{hT}, {v(HA+4*u,2)} offset:{32*u}")
k.join("L_ha2")
k(f"s_cmp_ge_u32 {sI}, 28\ns_cbranch_scc1 L_spare")
wgu_patterns()
k(f"s_sub_u32 s91, {sW}, 4\ns_mul_i32 s89, s91, {8*3584}\ns_lshl_b32 s88, s91, 10")
for mat, m in PART1:
    for hh_ in range(2):
        k(f"s_add_u32 m0, s88, {(L_G if mat == 'G' else L_U)+8192*m+4096*hh_}\ns_add_u32 s90, s89, {(64*m+32*hh_)*3584}")
        k(f"buffer_load_dwordx4 v{vDG if mat == 'G' else vDU}, {WG if mat == 'G' else WU}, s90 offen lds")
modl_read()
k("s_waitcnt lgkmcnt(0)")
barrier()
stamp(8)
k("s_branch L_p2")
k.restore_at("L_spare")
k("s_waitcnt lgkmcnt(0)\ns_barrier")
k("s_barrier")
k(f"s_sub_u32 s91, {sI}, 28\ns_lshl_b32 s91, s91, 2\ns_add_u32 s91, s91, {sW}\ns_sub_u32 s91, s91, 4")
step = 64
for r0 in range(PF0_ROWS, 448, step):
    r1 = min(448, r0 + step)
    prefetch(WG, r0 * 3584, r1 * 3584, "s91", 16); prefetch(WU, r0 * 3584, r1 * 3584, "s91", 16)
    k("s_waitcnt vmcnt(20)")
for i0 in range(0, 28, 7):
    for q in range(4):
        prefetch(WD, (448 * q + 16 * i0) * 896, (448 * q + 16 * (i0 + 7)) * 896, "s91", 16)
    k("s_waitcnt vmcnt(20)")
k("s_branch L_fin")
k.flush_ool()
k("L_code_end:\ns_endpgm")

ref = open(f"cdna_kernels/{NAME}.s.ref").read().splitlines()
hdr = [l for l in ref if l.startswith(";") and "@launch" not in l]
out = "\n".join(hdr) + f"\n; @launch grid=(256,1,1) block=(512,1,1) lds={L_END}\n"
out += '.amdgcn_target "amdgcn-amd-amdhsa--gfx950"\n.text\n' + k.text() + '.section .rodata,"a"\n' + k.descriptor()
print("regs v/a/s", k.maxregs(), "instrs", len(k.out), file=sys.stderr)
args = [a_ for a_ in sys.argv[1:] if not a_.startswith("--")]
open(args[0] if args else f"cdna_kernels/{NAME}.s", "w").write(out)
```
